```python
import torch

def _softmax(x, axis=-1):
    return torch.softmax(x, dim=axis)
def _gelu(x):
    return torch.nn.functional.gelu(x, approximate="tanh")
def _silu(x):
    return torch.nn.functional.silu(x)
def _sigmoid(x):
    return torch.sigmoid(x)
def _layernorm(x, axis=-1, eps=1e-5):
    m = x.mean(dim=axis, keepdim=True)
    v = x.var(dim=axis, keepdim=True, unbiased=False)
    return (x - m) / torch.sqrt(v + eps)
def _scatter_add(tgt, idx, src, axis=0):
    return tgt.clone().index_add_(axis, idx, src)
def _segment_sum(src, seg, n):
    out = torch.zeros((n,) + src.shape[1:], dtype=src.dtype)
    return out.index_add_(0, seg, src)
def _pad(x, pw):
    flat = tuple(v for pair in reversed(pw) for v in pair)
    return torch.nn.functional.pad(x, flat)

kernel_name = 'sequential_preLN__sliding_local_dilated__dense_activation_relu__prompt'

def setup_inputs():

    _w = (lambda a: (lambda t: t.to(torch.bfloat16) if t.is_floating_point() else t)(torch.as_tensor(a)))
    def _A_setup():
        B, S, D = 1, 2048, 448
        return {
            "x": _w((lambda *s: torch.randn(*s, dtype=torch.bfloat16) * 0.05)(B, S, D)),
            "wqkv": _w((lambda *s: torch.randn(*s, dtype=torch.bfloat16) * 0.05)(D, 3 * D)),
            "wo": _w((lambda *s: torch.randn(*s, dtype=torch.bfloat16) * 0.05)(D, D)),
        }
    _A_in = _A_setup()

    def _B_setup():
        B, S, D, Dff = 1, 2048, 448, 1792
        return {
            "x": _w((lambda *s: torch.randn(*s, dtype=torch.bfloat16) * 0.05)(B, S, D)),
            "w1": _w((lambda *s: torch.randn(*s, dtype=torch.bfloat16) * 0.05)(D, Dff)),
            "w2": _w((lambda *s: torch.randn(*s, dtype=torch.bfloat16) * 0.05)(Dff, D)),
        }
    _B_in = _B_setup()

    return {
        "A_x": _A_in["x"],
        "A_wqkv": _A_in["wqkv"],
        "A_wo": _A_in["wo"],
        "B_x": _B_in["x"],
        "B_w1": _B_in["w1"],
        "B_w2": _B_in["w2"],
    }

def reference(A_x, A_wqkv, A_wo, B_x, B_w1, B_w2):
    def _A_ref(x, wqkv, wo):
        B, S, D = x.shape
        H = 16; Dh = D // H
        W, dil = 8, 2
        qkv = (lambda x, *d: x.permute(*d))((x @ wqkv).reshape(B, S, 3, H, Dh), 2, 0, 3, 1, 4)
        q, k, v = qkv[0], qkv[1], qkv[2]
        scale = Dh ** -0.5
        pos = torch.arange(S)
        off = torch.arange(W) * dil
        idx = pos[:, None] - off[None, :]
        mask = idx >= 0
        idx_c = torch.where(mask, idx, 0).reshape(-1)
        kg = k[:, :, idx_c, :].reshape(B, H, S, W, Dh)
        vg = v[:, :, idx_c, :].reshape(B, H, S, W, Dh)
        logits = torch.einsum("bhsd,bhswd->bhsw", q, kg) * scale
        logits = torch.where(mask[None, None, :, :], logits, -1e9)
        attn = _softmax(logits, axis=-1)
        o = torch.einsum("bhsw,bhswd->bhsd", attn, vg)
        return (lambda x, *d: x.permute(*d))(o, 0, 2, 1, 3).reshape(B, S, D) @ wo

    def _B_ref(x, w1, w2):
        h = torch.einsum("bsd,df->bsf", x, w1)
        zero = torch.zeros_like(h)
        h = torch.maximum(h, zero)
        return torch.einsum("bsf,fd->bsd", h, w2)

    x = A_x
    h = x + _A_ref(_layernorm(x, axis=-1), A_wqkv, A_wo)
    h2 = h + _B_ref(_layernorm(h, axis=-1), B_w1, B_w2)
    return h2
```

```python
KN = "sequential_preLN__sliding_local_dilated__dense_activation_relu__prompt"

class Asm:
    def __init__(self):
        self.l = []
        self._lab = 0
    def __call__(self, s=""):
        for x in s.split("\n"):
            x = x.strip()
            if x:
                self.l.append(x if x.endswith(":") else "    " + x)
    def c(self, s):
        self.l.append("    ; " + s)
    def label(self, n):
        self.l.append(n + ":")
    def newlabel(self, p="L"):
        self._lab += 1
        return f"{p}_{self._lab}"
    def text(self):
        return "\n".join(self.l) + "\n"

HEADER = """; Kernarg layout for this problem (72 bytes, ptrs only, base s[0:1]):
"""

def wrap(launches, bodies, extra_header=""):
    s = HEADER + extra_header
    if len(launches) == 1 and launches[0][0] is None:
        _, g, b, lds = launches[0]
        s += f"; @launch grid=({g[0]},{g[1]},{g[2]}) block=({b[0]},{b[1]},{b[2]}) lds={lds}\n"
    else:
        for lab, g, b, lds in launches:
            s += f"; @launch kernel={lab} grid=({g[0]},{g[1]},{g[2]}) block=({b[0]},{b[1]},{b[2]}) lds={lds}\n"
    s += '.amdgcn_target "amdgcn-amd-amdhsa--gfx950"\n.text\n'
    for lab, text, v, sg, acc in bodies:
        lab = lab or KN + "_kernel"
        s += f".globl {lab}\n.p2align 8\n.type {lab},@function\n{lab}:\n{text}"
    s += '.section .rodata,"a"\n'
    for lab, text, v, sg, acc in bodies:
        lab = lab or KN + "_kernel"
        s += f""".p2align 6
.amdhsa_kernel {lab}
  .amdhsa_next_free_vgpr {v}
  .amdhsa_next_free_sgpr {sg}
  .amdhsa_accum_offset {acc}
  .amdhsa_group_segment_fixed_size 0
  .amdhsa_kernarg_size 72
  .amdhsa_user_sgpr_count 2
  .amdhsa_user_sgpr_kernarg_segment_ptr 1
  .amdhsa_system_sgpr_workgroup_id_x 1
.end_amdhsa_kernel
"""
    return s
```

```python
import re
REG = re.compile(r'(?<![\w.])([vas])(?:\[(\d+):(\d+)\]|(\d+))(?![\w])')
TRANS = ("v_exp_f32","v_log_f32","v_rcp_f32","v_rsq_f32","v_sqrt_f32","v_sin_f32","v_cos_f32","v_rcp_iflag_f32")
def regs_of(op):
    out = set()
    for m in REG.finditer(op):
        k = m.group(1)
        if m.group(2) is not None:
            for i in range(int(m.group(2)), int(m.group(3)) + 1): out.add((k, i))
        else: out.add((k, int(m.group(4))))
    if re.search(r'\bvcc\b', op): out |= {('s','vcc')}
    if re.search(r'\bexec\b', op): out |= {('s','exec')}
    if re.search(r'\bm0\b', op): out |= {('s','m0')}
    return out
class I:
    __slots__ = ("text","mn","ops","dst","src","kind","passes","srcC","nstates")
    def __init__(self, text):
        self.text = text
        t = text.split(";")[0].strip()
        parts = t.split(None, 1)
        self.mn = parts[0]
        rest = parts[1] if len(parts) > 1 else ""
        ops = []; cur = ""; d = 0
        for ch in rest:
            if ch == '[': d += 1
            if ch == ']': d -= 1
            if ch == ',' and d == 0: ops.append(cur.strip()); cur = ""
            else: cur += ch
        if cur.strip(): ops.append(cur.strip())
        self.ops = ops
        mn = self.mn
        self.dst = set(); self.src = set(); self.srcC = set(); self.passes = 0; self.nstates = 1
        if mn == "s_nop":
            self.kind = "nop"; self.nstates = int(ops[0], 0) + 1; return
        if mn.startswith("v_mfma"):
            self.kind = "mfma"
            self.passes = 8 if "32x32" in mn else 4
            self.dst = regs_of(ops[0]); self.src = regs_of(ops[1]) | regs_of(ops[2]); self.srcC = regs_of(ops[3].split()[0]) if len(ops) > 3 else set()
            return
        if mn.startswith("v_"):
            self.kind = "valu"
            base = mn.replace("_e32","").replace("_e64","").replace("_dpp","").replace("_sdwa","")
            if base.startswith("v_cmp"):
                self.dst = regs_of(ops[0]); self.src = set().union(*[regs_of(o) for o in ops[1:]])
                if base.startswith("v_cmpx"): self.dst |= {('s','exec')}
            elif base.startswith("v_permlane") and "swap" in base:
                self.dst = regs_of(ops[0]) | regs_of(ops[1]); self.src = set(self.dst)
            elif base in ("v_add_co_u32","v_sub_co_u32","v_subrev_co_u32","v_addc_co_u32","v_subb_co_u32"):
                self.dst = regs_of(ops[0]) | regs_of(ops[1]); self.src = set().union(*[regs_of(o) for o in ops[2:]])
            else:
                self.dst = regs_of(ops[0]); self.src = set().union(*[regs_of(o) for o in ops[1:]]) if len(ops) > 1 else set()
                if base.startswith(("v_fmac","v_dot2c","v_pk_fmac","v_writelane")): self.src |= self.dst
                if base == "v_cndmask_b32" and len(ops) == 3: self.src |= {('s','vcc')}
                if base.startswith("v_mov_b32") and "dpp" in mn: self.src |= self.dst
            return
        if mn.startswith("ds_"):
            self.kind = "ds"
            if mn.startswith(("ds_read","ds_bpermute","ds_permute","ds_swizzle")):
                self.dst = regs_of(ops[0]); self.src = set().union(*[regs_of(o) for o in ops[1:]])
            else:
                self.src = set().union(*[regs_of(o) for o in ops])
            return
        if mn.startswith(("buffer_","global_","flat_")):
            self.kind = "vmem"
            allr = [regs_of(o) for o in ops]
            islds = re.search(r'\blds\b', rest) is not None
            if "load" in mn and not islds and "lds" not in mn:
                self.dst = allr[0]; self.src = set().union(*allr[1:])
            elif "atomic" in mn and (" sc0" in rest):
                self.dst = allr[0]; self.src = set().union(*allr)
            else:
                self.src = set().union(*allr) if allr else set()
                if islds or "lds" in mn: self.src |= {('s','m0')}
            return
        if mn.startswith("s_"):
            self.kind = "salu"
            if mn.startswith(("s_cmp","s_cbranch","s_branch","s_waitcnt","s_barrier","s_endpgm","s_sleep","s_setprio","s_bitcmp")):
                self.src = set().union(*[regs_of(o) for o in ops]) if ops else set()
            else:
                self.dst = regs_of(ops[0]) if ops else set(); self.src = set().union(*[regs_of(o) for o in ops[1:]]) if len(ops) > 1 else set()
                if "saveexec" in mn: self.dst |= {('s','exec')}
            return
        self.kind = "other"
def V(s): return {r for r in s if r[0] in 'va'}
def S(s): return {r for r in s if r[0] == 's'}
def need(p, c):
    n = 0
    base = c.mn
    if p.kind == "valu":
        w = V(p.dst)
        if c.kind == "mfma" and w & (c.src | c.srcC): n = max(n, 2)
        if c.kind == "valu":
            if ("dpp" in c.text or "row_" in c.text or "quad_perm" in c.text) and w & V(c.src): n = max(n, 2)
            if c.mn.startswith("v_permlane") and w & V(c.src): n = max(n, 2)
            if c.mn.startswith(("v_readlane","v_readfirstlane")) and w & V(c.src): n = max(n, 1)
            if p.mn.replace("_e32","").replace("_e64","") in TRANS and w & V(c.src) : n = max(n, 1)
            if p.mn.startswith("v_dot") and (w & (V(c.src) | V(c.dst))): n = max(n, 3)
        if p.mn.replace("_e32","").replace("_e64","") in TRANS and c.kind in ("ds","vmem","mfma") and w & (V(c.src)|c.srcC): n = max(n, 2)
        sw = S(p.dst)
        if sw:
            if c.kind == "valu" and sw & S(c.src):
                n = max(n, 4 if c.mn.startswith(("v_readlane","v_writelane")) else 2)
            if c.kind == "vmem" and sw & S(c.src): n = max(n, 5)
            if c.kind == "salu" and sw & S(c.src): n = max(n, 4)
            if ('s','exec') in sw and c.kind in ("mfma",): n = max(n, 4)
            if ('s','exec') in sw and c.kind == "valu" and c.mn.startswith(("v_readlane","v_readfirstlane","v_writelane","v_permlane")): n = max(n, 4)
    if p.kind == "mfma":
        d = p.dst
        big = {4: 8, 8: 12}[p.passes]; ov = {4: 6, 8: 10}[p.passes]
        if c.kind == "mfma":
            if d & c.src: n = max(n, big)
            if d & c.srcC:
                if not (c.srcC == d and c.passes == p.passes): n = max(n, ov)
            if d & c.dst and not (c.dst == d and c.srcC == d): n = max(n, ov)
        elif c.kind in ("valu","ds","vmem"):
            if d & (V(c.src) | V(c.dst)): n = max(n, big)
        if c.kind == "valu" and p.srcC & V(c.dst): n = max(n, {4: 3, 8: 7}[p.passes])
        if c.kind in ("ds","vmem") and p.srcC & V(c.dst): n = max(n, {4: 3, 8: 7}[p.passes])
    if p.kind == "vmem" and ("store" in p.mn or "atomic" in p.mn) and ("x4" in p.mn or "x3" in p.mn):
        if c.kind in ("valu","mfma") and V(p.src) & V(c.dst): n = max(n, 2)
        if c.kind in ("ds","vmem") and V(p.src) & V(c.dst): n = max(n, 2)
    if p.kind == "ds" and p.mn.startswith("ds_write") and ("b128" in p.mn or "b96" in p.mn):
        if c.kind in ("valu","mfma") and V(p.src) & V(c.dst): n = max(n, 1)
    if p.kind == "salu" and ('s','m0') in p.dst:
        if c.kind == "vmem" and ('s','m0') in c.src: n = max(n, 1)
    if p.kind == "salu" and ('s','exec') in p.dst:
        if c.kind == "valu" and ("dpp" in c.text or "row_" in c.text): n = max(n, 1)
    return n
WIN = 24
def pad(lines):
    out = []
    ins = []
    for ln in lines:
        s = ln.strip()
        if not s or s.startswith(";") or s.startswith(".") or s.endswith(":"):
            ins.append((ln, None))
        else:
            ins.append((ln, I(s)))
    def deficit(hist, c):
        dist = 0; d = 0
        for p in reversed(hist):
            n = need(p, c)
            if n > dist: d = max(d, n - dist)
            dist += p.nstates
            if dist >= WIN: break
        return d
    res = []; hist = []; npad = 0
    for ln, it in ins:
        if it is None:
            if ln.strip().startswith((".rept", ".endr")): raise ValueError("no .rept with hazard pass")
            res.append((ln, None)); continue
        d = deficit(hist, it)
        if d > 0:
            nop = I(f"s_nop {d-1}"); res.append((f"    s_nop {d-1}", nop)); hist.append(nop); npad += d
        res.append((ln, it)); hist.append(it)
        if it.mn in ("s_branch", "s_endpgm", "s_setpc_b64"): hist = []
        if len(hist) > 64: hist = hist[-40:]
    labels = {ln.strip()[:-1]: i for i, (ln, it) in enumerate(res) if it is None and ln.strip().endswith(":")}
    extra = {}
    for i, (ln, it) in enumerate(res):
        if it is not None and it.mn.startswith(("s_branch", "s_cbranch")):
            tgt = it.ops[0]
            if tgt not in labels: raise ValueError("unknown label " + tgt)
            h = [x for (_, x) in res[max(0, i - 60):i + 1] if x is not None]
            j = labels[tgt] + 1; dist = 0; need_pad = 0
            while j < len(res) and dist < WIN:
                c = res[j][1]
                if c is not None:
                    d = deficit(h, c)
                    need_pad = max(need_pad, d)
                    h = h + [c]; dist += c.nstates
                    if c.mn in ("s_branch", "s_endpgm"): break
                j += 1
            if need_pad: extra[labels[tgt]] = max(extra.get(labels[tgt], 0), need_pad)
    final = []
    for i, (ln, it) in enumerate(res):
        final.append(ln)
        if i in extra: final.append(f"    s_nop {extra[i]-1}"); npad += extra[i]
    return final, npad
```

```python
import struct, sys, math
from asmlib import *
import hazard

def f2h(x): return "0x%08x" % struct.unpack("<I", struct.pack("<f", x))[0]

WS_WOP, WS_W1P, WS_W2P = 0x000000, 0x080000, 0x210000
WS_O, WS_H, WS_ST, WS_FL, WS_HID, WS_SIZE = 0x400000, 0x600000, 0x7C0000, 0x7F0000, 0x800000, 0x1000000
sW, sC, sM, sRH, sCG = 3, 32, 33, 34, 35
SRD_X, SRD_QKV, SRD_WS, SRD_OUT, SRD_P0, SRD_DBG = 8, 12, 16, 20, 24, 28
def r(b, n=4): return f"[{b}:{b+n-1}]"
def v(b, n=4): return f"v[{b}:{b+n-1}]" if n > 1 else f"v{b}"
def ac(b, n=4): return f"a[{b}:{b+n-1}]" if n > 1 else f"a{b}"
def s(b, n=4): return f"s[{b}:{b+n-1}]" if n > 1 else f"s{b}"
MF = "v_mfma_f32_16x16x32_bf16"

def srd(a, d, base, nbytes):
    a(f"s_mov_b32 s{d}, s{base}\ns_and_b32 s{d+1}, s{base+1}, 0xffff\ns_mov_b32 s{d+2}, {nbytes}\ns_mov_b32 s{d+3}, 0x20000")

def prologue(a, done):
    a(f"s_cmp_ge_u32 s2, 256\ns_cbranch_scc1 {done}")
    a("s_load_dwordx4 s[44:47], s[0:1], 0")
    a("s_load_dwordx2 s[48:49], s[0:1], 16")
    a("s_load_dwordx4 s[52:55], s[0:1], 32")
    a("s_load_dwordx4 s[56:59], s[0:1], 48")
    a("s_load_dwordx2 s[60:61], s[0:1], 64")
    a("v_lshrrev_b32 v2, 6, v0\nv_and_b32 v1, 63, v0")
    a(f"v_readfirstlane_b32 s{sW}, v2")
    a(f"s_and_b32 s36, s2, 7\ns_lshr_b32 s37, s2, 3")
    a(f"s_lshr_b32 s38, s37, 4\ns_lshl_b32 s36, s36, 1\ns_add_u32 s{sC}, s36, s38\ns_and_b32 s{sM}, s37, 15")
    a(f"s_cmp_ge_u32 s{sM}, 7\ns_cselect_b32 s{sRH}, 1, 0\ns_mul_i32 s36, s{sRH}, 7\ns_sub_u32 s{sCG}, s{sM}, s36")
    a("s_waitcnt lgkmcnt(0)")
    srd(a, SRD_X, 44, 2048*896); srd(a, SRD_QKV, 46, 448*2688); srd(a, SRD_WS, 60, WS_SIZE)
    srd(a, SRD_OUT, 56, 2048*896); srd(a, SRD_DBG, 58, 256)

P0_LDS = 122880
def p0_issue(a):
    a(f"s_lshl_b32 s36, s2, 2\ns_add_u32 s36, s36, s{sW}\ns_sub_u32 s37, s36, 128\ns_cmp_ge_u32 s36, 896\ns_cselect_b32 s36, s37, s36")
    L2, L3, LE = a.newlabel("P0b"), a.newlabel("P0c"), a.newlabel("P0e")
    a(f"s_cmp_ge_u32 s36, 392\ns_cbranch_scc1 {L2}")
    a("s_mul_hi_u32 s37, s36, 0x0924924a\ns_mul_i32 s38, s37, 28\ns_sub_u32 s38, s36, s38")
    srd(a, SRD_P0, 52, 448*3584)
    a("s_movk_i32 s40, 3584\ns_mul_i32 s41, s37, 32*3584\ns_lshl_b32 s39, s38, 7\ns_add_u32 s41, s41, s39")
    a("s_lshr_b32 s39, s38, 1\ns_mul_i32 s39, s39, 14\ns_add_u32 s39, s39, s37\ns_lshl_b32 s39, s39, 3\ns_and_b32 s42, s38, 1\ns_lshl_b32 s42, s42, 2\ns_add_u32 s39, s39, s42")
    a(f"s_lshl_b32 s42, s39, 10\ns_add_u32 s42, s42, {WS_W1P}\ns_mov_b32 s43, 0\ns_branch {LE}")
    a.label(L2)
    a(f"s_cmp_ge_u32 s36, 784\ns_cbranch_scc1 {L3}")
    a("s_sub_u32 s36, s36, 392\ns_mul_hi_u32 s37, s36, 0x24924925\ns_mul_i32 s38, s37, 7\ns_sub_u32 s38, s36, s38")
    srd(a, SRD_P0, 54, 1792*896)
    a("s_movk_i32 s40, 896\ns_mul_i32 s41, s37, 32*896\ns_lshl_b32 s39, s38, 7\ns_add_u32 s41, s41, s39")
    a(f"s_mul_i32 s39, s38, 56\ns_add_u32 s39, s39, s37\ns_lshl_b32 s42, s39, 12\ns_add_u32 s42, s42, {WS_W2P}\ns_mov_b32 s43, 0\ns_branch {LE}")
    a.label(L3)
    a("s_sub_u32 s36, s36, 784\ns_mul_hi_u32 s37, s36, 0x24924925\ns_mul_i32 s38, s37, 7\ns_sub_u32 s38, s36, s38")
    srd(a, SRD_P0, 48, 448*896)
    a("s_movk_i32 s40, 896\ns_mul_i32 s41, s37, 28*896\ns_lshl_b32 s39, s38, 7\ns_add_u32 s41, s41, s39")
    a(f"s_lshl_b32 s39, s38, 4\ns_add_u32 s39, s39, s37\ns_lshl_b32 s42, s39, 12\ns_add_u32 s42, s42, {WS_WOP}\ns_mov_b32 s43, 1")
    a.label(LE)
    a("v_lshrrev_b32 v13, 3, v1\nv_mul_lo_u32 v13, v13, s40\nv_and_b32 v14, 7, v1\nv_lshl_add_u32 v13, v14, 4, v13")
    a(f"s_lshl_b32 s39, s{sW}, 12\ns_lshl_b32 s38, s40, 3")
    for i in range(4):
        a(f"s_add_u32 m0, s39, {P0_LDS + i*1024}")
        if i: a("s_add_u32 s41, s41, s38")
        else: a("s_nop 0")
        a(f"buffer_load_dwordx4 v13, {s(SRD_P0)}, s41 offen lds")
def p0_finish(a, nwait):
    a(f"s_waitcnt vmcnt({nwait})")
    a("v_lshrrev_b32 v13, 4, v1\nv_lshlrev_b32 v13, 2, v13\nv_bfe_u32 v14, v1, 2, 2\nv_add_u32 v13, v13, v14\nv_lshlrev_b32 v13, 7, v13")
    a(f"v_and_b32 v14, 3, v1\nv_lshl_add_u32 v13, v14, 3, v13\ns_lshl_b32 s39, s{sW}, 12\ns_add_u32 s39, s39, {P0_LDS}\nv_add_u32 v13, s39, v13")
    for f in range(4):
        for hf in range(2):
            a(f"ds_read_b64_tr_b16 {v(204 + 4*f + 2*hf, 2)}, v13 offset:{f*32 + hf*2048}")
    a("s_waitcnt lgkmcnt(0)")
    L = a.newlabel("P0z")
    a(f"s_cmp_eq_u32 s43, 0\ns_cbranch_scc1 {L}")
    a("s_mov_b32 exec_lo, 0\ns_mov_b32 exec_hi, 0xffff0000")
    for f in range(4): a(f"v_mov_b32 v{204+4*f+2}, 0\nv_mov_b32 v{204+4*f+3}, 0")
    a("s_mov_b64 exec, -1")
    a.label(L)
    a("v_lshlrev_b32 v10, 4, v1")
    for f in range(4):
        a(f"s_add_u32 s39, s42, {f*1024}")
        a(f"buffer_store_dwordx4 {v(204+4*f)}, v10, {s(SRD_WS)}, s39 offen sc1")

SLOT = 30720
XF = [20, 32]; WF = [44, 68]
accQ, accK, accV, csQ, csK, csV, RS, GR, ONES = 92, 108, 132, 156, 164, 172, 180, 192, 16
def p1_setup(a):
    a(f"s_lshl_b32 s36, s{sC}, 7\ns_sub_u32 s36, s36, 16\ns_lshl_b32 s37, s{sW}, 3\ns_add_u32 s36, s36, s37")
    a("v_lshrrev_b32 v13, 3, v1\nv_add_u32 v13, s36, v13")
    a(f"s_and_b32 s37, s{sW}, 1\ns_lshl_b32 s37, s37, 2\nv_lshrrev_b32 v14, 4, v1\nv_add_u32 v14, s37, v14\nv_and_b32 v15, 7, v1\nv_xor_b32 v14, v14, v15\nv_lshlrev_b32 v14, 4, v14")
    a("s_movk_i32 s38, 896\nv_max_i32 v15, 0, v13\nv_mul_lo_u32 v15, v15, s38\nv_add_u32 v2, v15, v14")
    a("v_add_u32 v13, 32, v13\nv_mul_lo_u32 v13, v13, s38\nv_add_u32 v3, v13, v14")
    a(f"s_lshl_b32 s36, s{sC}, 7\ns_add_u32 s36, s36, 112\ns_lshl_b32 s37, s{sW}, 2\ns_add_u32 s36, s36, s37")
    a("v_lshrrev_b32 v13, 3, v1\nv_add_u32 v13, s36, v13\nv_mul_lo_u32 v13, v13, s38")
    a(f"s_lshl_b32 s37, s{sW}, 1\nv_lshrrev_b32 v14, 4, v1\nv_add_u32 v14, s37, v14\nv_and_b32 v14, 7, v14\nv_and_b32 v15, 7, v1\nv_xor_b32 v14, v14, v15\nv_lshl_add_u32 v4, v14, 4, v13")
    a(f"s_lshl_b32 s36, s{sW}, 4\nv_lshrrev_b32 v13, 2, v1\nv_add_u32 v13, s36, v13\ns_movk_i32 s38, 2688\nv_mul_lo_u32 v13, v13, s38")
    a(f"v_lshrrev_b32 v14, 5, v1\nv_lshlrev_b32 v14, 1, v14\nv_and_b32 v15, 3, v1\nv_xor_b32 v14, v14, v15\nv_lshl_add_u32 v13, v14, 4, v13\ns_mul_i32 s36, s{sM}, 56\nv_add_u32 v5, s36, v13")
    a(f"v_and_b32 v13, 15, v1\ns_lshl_b32 s36, s{sW}, 5\nv_add_u32 v14, s36, v13\nv_lshlrev_b32 v14, 7, v14")
    a("v_lshrrev_b32 v13, 1, v13\nv_lshrrev_b32 v15, 4, v1\nv_xor_b32 v13, v13, v15\nv_lshl_add_u32 v6, v13, 4, v14\nv_xor_b32 v13, 4, v13\nv_lshl_add_u32 v7, v13, 4, v14")
    a("v_lshrrev_b32 v13, 4, v1\nv_lshlrev_b32 v14, 3, v13\nv_bfe_u32 v15, v1, 2, 2\nv_add_u32 v14, v14, v15\nv_lshlrev_b32 v14, 6, v14")
    a("v_and_b32 v15, 1, v1\nv_lshl_add_u32 v14, v15, 3, v14\nv_add_u32 v14, 18432, v14")
    a("v_and_b32 v13, 1, v13\nv_lshlrev_b32 v13, 1, v13\nv_bfe_u32 v15, v1, 1, 1\nv_add_u32 v13, v13, v15")
    a("v_lshl_add_u32 v8, v13, 4, v14\nv_xor_b32 v13, 2, v13\nv_lshl_add_u32 v9, v13, 4, v14")
    for i in range(4): a(f"v_mov_b32 v{ONES+i}, 0x3f803f80")
    a(f"s_lshl_b32 s62, s{sW}, 10")
    a(f"s_lshl_b32 s63, s{sW}, 9")
def p1_issue_chunk(a, q):
    slot = (q % 5) * SLOT
    out = []
    for jj in range(4):
        out.append(f"s_add_u32 m0, s62, {slot + jj*4096}")
        out.append(f"s_mov_b32 s36, {q*128 + (jj-1)*32*896 if jj else q*128}")
        out.append(f"buffer_load_dwordx4 {'v3' if jj else 'v2'}, {s(SRD_X)}, s36 offen lds")
    out.append(f"s_add_u32 m0, s63, {slot + 16384}")
    out.append(f"s_mov_b32 s36, {q*128}\ns_mov_b32 exec_hi, 0")
    out.append(f"buffer_load_dwordx4 v4, {s(SRD_X)}, s36 offen lds")
    out.append("s_mov_b32 exec_hi, -1")
    for mat in range(3):
        out.append(f"s_add_u32 m0, s62, {slot + 18432 + mat*4096}")
        out.append(f"s_mov_b32 s36, {q*64*2688 + mat*896}")
        out.append(f"buffer_load_dwordx4 v5, {s(SRD_QKV)}, s36 offen lds")
    for x in out: a(x)
def p1_reads(ks):
    st = ks
    o = []
    xb = 'v6' if ks == 0 else 'v7'
    for tt in range(3): o.append(f"ds_read_b128 {v(XF[st] + 4*tt)}, {xb} offset:{tt*2048}")
    for mat in range(3):
        for t in range(2):
            for hf in range(2):
                o.append(f"ds_read_b64_tr_b16 {v(WF[st] + (mat*2+t)*4 + 2*hf, 2)}, {'v8' if t == 0 else 'v9'} offset:{mat*4096 + ks*2048 + hf*256}")
    return o
def p1_mfma(ks, first):
    st = ks
    X = lambda tt: v(XF[st] + 4*tt); Wm = lambda m, t: v(WF[st] + (m*2+t)*4); O = v(ONES)
    o = []
    def mf(d, A, B): o.append(f"{MF} {v(d)}, {A}, {B}, {'0' if first else v(d)}")
    for t in range(2):
        for q in range(2): mf(accQ + (q*2+t)*4, Wm(0, t), X(1+q))
        mf(csQ + 4*t, Wm(0, t), O)
    for tt in range(3): mf(RS + 4*tt, O, X(tt))
    for t in range(2):
        for tt in range(3): mf(accK + (tt*2+t)*4, Wm(1, t), X(tt))
        mf(csK + 4*t, Wm(1, t), O)
    for tt in range(3): mf(GR + 4*tt, X(tt), X(tt))
    for t in range(2):
        for tt in range(3): mf(accV + (tt*2+t)*4, X(tt), Wm(2, t))
        mf(csV + 4*t, O, Wm(2, t))
    return o
def interleave(main, bg, start=0, every=1):
    out = []; bi = 0
    for i, x in enumerate(main):
        out.append(x)
        if i >= start and (i - start) % every == 0 and bi < len(bg): out.append(bg[bi]); bi += 1
    out += bg[bi:]
    return out
def p1_compute_chunk(a, q):
    for x in p1_reads(0): a(x)
    a("s_waitcnt lgkmcnt(0)")
    for x in interleave(p1_mfma(0, q == 0), p1_reads(1)): a(x)
    a("s_waitcnt lgkmcnt(0)")
    for x in p1_mfma(1, False): a(x)
    if q < 6:
        d = (((q+1) % 5) - (q % 5)) * SLOT
        for rg in (6, 7, 8, 9): a(f"v_add_u32 v{rg}, {d & 0xffffffff}, v{rg}")
def allred(a, reg, tmp, op):
    a(f"v_mov_b32 v{tmp}, v{reg}\nv_permlane32_swap_b32 v{tmp}, v{reg}\n{op} v{reg}, v{reg}, v{tmp}")
    a(f"v_mov_b32 v{tmp}, v{reg}\nv_permlane16_swap_b32 v{tmp}, v{reg}\n{op} v{reg}, v{reg}, v{tmp}")
def p1_epilogue(a):
    T = 204
    MEAN, RSTD = T, T+3
    MV, RV = 20, 32
    a("v_and_b32 v13, 3, v1")
    for k in (1, 2, 3): a(f"v_cmp_eq_u32 s[{64+2*k}:{65+2*k}], {k}, v13")
    a("v_lshrrev_b32 v14, 4, v1\nv_cmp_eq_u32 s[64:65], 3, v14")
    a("v_and_b32 v13, 15, v1\nv_lshrrev_b32 v15, 2, v13\nv_lshl_add_u32 v11, v15, 4, v13\nv_lshlrev_b32 v11, 2, v11")
    a("v_lshlrev_b32 v12, 4, v14")
    for tt in range(3):
        g = GR + 4*tt
        a(f"v_cndmask_b32 v{T+6+tt}, v{g}, v{g+1}, s[66:67]\nv_cndmask_b32 v{T+6+tt}, v{T+6+tt}, v{g+2}, s[68:69]\nv_cndmask_b32 v{T+6+tt}, v{T+6+tt}, v{g+3}, s[70:71]")
        a(f"ds_bpermute_b32 v{T+6+tt}, v11, v{T+6+tt}")
        a(f"v_mul_f32 v{MEAN+tt}, {f2h(1/448)}, v{RS+4*tt}")
    a("s_waitcnt lgkmcnt(0)")
    a(f"s_mov_b32 s36, {f2h(1/448)}")
    for tt in range(3):
        a(f"v_mul_f32 v13, v{MEAN+tt}, v{MEAN+tt}\nv_fma_f32 v13, v{T+6+tt}, s36, -v13\nv_max_f32 v13, 0, v13\nv_add_f32 v13, {f2h(1e-5)}, v13\nv_rsq_f32 v{RSTD+tt}, v13")
    for tt in range(3):
        for k in range(4):
            a(f"ds_bpermute_b32 v{MV+4*tt+k}, v12, v{MEAN+tt} offset:{4*k}")
            a(f"ds_bpermute_b32 v{RV+4*tt+k}, v12, v{RSTD+tt} offset:{4*k}")
    KF = 44
    for tt in range(3):
        for t in range(2):
            b = accK + (tt*2+t)*4
            for k in range(4):
                a(f"v_fma_f32 v{b+k}, -v{MEAN+tt}, v{csK+4*t+k}, v{b+k}\nv_mul_f32 v{b+k}, v{b+k}, v{RSTD+tt}")
            a(f"v_cvt_pk_bf16_f32 v{KF+4*tt+2*t}, v{b}, v{b+1}\nv_cvt_pk_bf16_f32 v{KF+4*tt+2*t+1}, v{b+2}, v{b+3}")
    QF = 56
    sc = 28 ** -0.5 * math.log2(math.e)
    for q in range(2):
        a(f"v_mul_f32 v13, {f2h(sc)}, v{RSTD+1+q}\nv_cndmask_b32 v14, v13, 0, s[64:65]".replace("v_cndmask_b32 v14, v13, 0, s[64:65]", "v_mov_b32 v15, 0\nv_cndmask_b32 v14, v13, v15, s[64:65]"))
        for t in range(2):
            b = accQ + (q*2+t)*4
            for k in range(4):
                a(f"v_fma_f32 v{b+k}, -v{MEAN+1+q}, v{csQ+4*t+k}, v{b+k}\nv_mul_f32 v{b+k}, v{b+k}, v{13+t}")
            a(f"v_cvt_pk_bf16_f32 v{QF+4*q+2*t}, v{b}, v{b+1}\nv_cvt_pk_bf16_f32 v{QF+4*q+2*t+1}, v{b+2}, v{b+3}")
    a("s_waitcnt lgkmcnt(0)")
    VP = 64
    for tt in range(3):
        for t in range(2):
            b = accV + (tt*2+t)*4
            for k in range(4):
                a(f"v_fma_f32 v{b+k}, -v{MV+4*tt+k}, v{csV+4*t}, v{b+k}\nv_mul_f32 v{b+k}, v{b+k}, v{RV+4*tt+k}")
            a(f"v_cvt_pk_bf16_f32 v{VP+6*t+2*tt}, v{b}, v{b+1}\nv_cvt_pk_bf16_f32 v{VP+6*t+2*tt+1}, v{b+2}, v{b+3}")
    BP, BC, BP0 = 76, 80, 84
    a("v_and_b32 v13, 15, v1\nv_lshrrev_b32 v14, 4, v1\nv_lshlrev_b32 v14, 2, v14\nv_sub_u32 v13, v13, v14")
    a(f"v_mov_b32 v15, {f2h(-1e30)}\nv_mov_b32 v{T+9}, 0")
    for k in range(4):
        a(f"v_subrev_u32 v14, {k}, v13")
        a(f"v_and_b32 v{T+10}, 0x80000001, v14\nv_cmp_eq_u32 vcc, 0, v{T+10}\nv_cndmask_b32 v{BC+k}, v15, v{T+9}, vcc")
        a(f"v_add_u32 v14, 1, v14\nv_and_b32 v{T+10}, 0x80000001, v14\nv_cmp_eq_u32 vcc, 0x80000001, v{T+10}\nv_cndmask_b32 v{BP+k}, v15, v{T+9}, vcc")
    a(f"s_or_b32 s36, s{sC}, s{sW}\ns_cmp_eq_u32 s36, 0\ns_cselect_b64 s[66:67], -1, 0")
    for k in range(4): a(f"v_cndmask_b32 v{BP0+k}, v{BP+k}, v15, s[66:67]")
    S0, S1, PP, OO = 92, 96, 100, 104
    for q in range(2):
        a(f"{MF} {v(S0)}, {v(KF+4*q)}, {v(QF+4*q)}, {v(BP0 if q == 0 else BP)}")
        a(f"{MF} {v(S1)}, {v(KF+4*(q+1))}, {v(QF+4*q)}, {v(BC)}")
        a(f"v_max3_f32 v13, v{S0}, v{S0+1}, v{S0+2}\nv_max3_f32 v13, v13, v{S0+3}, v{S1}\nv_max3_f32 v13, v13, v{S1+1}, v{S1+2}\nv_max_f32 v13, v13, v{S1+3}")
        allred(a, 13, 14, "v_max_f32")
        for k in range(8): a(f"v_sub_f32 v{S0+k}, v{S0+k}, v13")
        for k in range(8): a(f"v_exp_f32 v{S0+k}, v{S0+k}")
        a(f"v_add_f32 v13, v{S0}, v{S0+1}")
        for k in range(2, 8): a(f"v_add_f32 v13, v13, v{S0+k}")
        allred(a, 13, 14, "v_add_f32")
        a("v_rcp_f32 v13, v13")
        for k in range(8): a(f"v_mul_f32 v{S0+k}, v{S0+k}, v13")
        for k in range(4): a(f"v_cvt_pk_bf16_f32 v{PP+k}, v{S0+2*k}, v{S0+2*k+1}")
        for t in range(2): a(f"{MF} {v(OO+4*t)}, {v(VP+6*t+2*q)}, {v(PP)}, 0")
        for k in range(4): a(f"v_cvt_pk_bf16_f32 v{112+4*q+k}, v{OO+2*k}, v{OO+2*k+1}")
        a(f"s_lshl_b32 s36, s{sC}, 3\ns_lshl_b32 s37, s{sW}, 1\ns_add_u32 s36, s36, s37\ns_add_u32 s36, s36, {q}\ns_lshl_b32 s36, s36, 4\ns_add_u32 s36, s36, s{sM}\ns_lshl_b32 s36, s36, 10\ns_add_u32 s36, s36, {WS_O}")
        a(f"buffer_store_dwordx4 {v(112+4*q)}, v10, {s(SRD_WS)}, s36 offen sc1")

def k1():
    a = Asm(); done = "K1_done"
    prologue(a, done)
    p0_issue(a)
    p1_setup(a)
    for q in range(4): p1_issue_chunk(a, q)
    p0_finish(a, 32)
    waits = [28, 20, 20, 16, 16, 8, 0]
    for q in range(7):
        a(f"s_waitcnt vmcnt({waits[q]})\ns_barrier")
        if 1 <= q <= 3: p1_issue_chunk(a, q + 3)
        p1_compute_chunk(a, q)
    p1_epilogue(a)
    a.label(done); a("s_endpgm")
    return a

def k2():
    a = Asm(); done = "K2_done"
    prologue(a, done)
    a(f"s_cmp_ge_u32 s{sM}, 14\ns_cbranch_scc1 {done}")
    LWO = 98304
    a("v_lshlrev_b32 v10, 4, v1")
    a(f"s_lshl_b32 s36, s{sCG}, 16\ns_lshl_b32 s37, s{sW}, 14\ns_add_u32 s36, s36, s37\ns_add_u32 s36, s36, {WS_WOP}\ns_add_u32 s37, s37, {LWO}")
    for i in range(16):
        a(f"s_add_u32 m0, s37, {i*1024}\ns_add_u32 s38, s36, {i*1024}\nbuffer_load_dwordx4 v10, {s(SRD_WS)}, s38 offen lds")
    a(f"s_lshl_b32 s40, s{sC}, 3\ns_lshl_b32 s37, s{sRH}, 2\ns_add_u32 s40, s40, s37\ns_add_u32 s40, s40, s{sW}")
    a(f"v_and_b32 v13, 15, v1\ns_lshl_b32 s37, s40, 4\nv_add_u32 v13, s37, v13\ns_movk_i32 s38, 896\nv_mul_lo_u32 v13, v13, s38\nv_lshrrev_b32 v14, 4, v1\nv_lshl_add_u32 v13, v14, 3, v13\ns_lshl_b32 s37, s{sCG}, 7\nv_add_u32 v13, s37, v13")
    XR = 16
    for f in range(4): a(f"buffer_load_dwordx2 {v(XR+2*f, 2)}, v13, {s(SRD_X)}, 0 offen offset:{f*32}")
    OF = 32
    a(f"s_lshl_b32 s36, s40, 14\ns_add_u32 s36, s36, {WS_O}")
    for h in range(16):
        a(f"s_add_u32 s37, s36, {h*1024}\nbuffer_load_dwordx4 {v(OF+4*h)}, v10, {s(SRD_WS)}, s37 offen sc1")
    a("s_waitcnt vmcnt(20)\ns_barrier")
    a(f"v_add_u32 v11, {LWO}, v10")
    A = [96, 112]; ACC = 128
    for f in range(4): a(f"ds_read_b128 {v(A[0]+4*f)}, v11 offset:{f*1024}")
    for h in range(16):
        if h < 15:
            for f in range(4): a(f"ds_read_b128 {v(A[(h+1)&1]+4*f)}, v11 offset:{((h+1)*4+f)*1024}")
        a(f"s_waitcnt vmcnt({15-h}) lgkmcnt({4 if h < 15 else 0})")
        for f in range(4): a(f"{MF} {v(ACC+4*f)}, {v(A[h&1]+4*f)}, {v(OF+4*h)}, {'0' if h == 0 else v(ACC+4*f)}")
    HV = 144
    for f in range(4):
        for k in range(2):
            a(f"v_lshlrev_b32 v{HV+4*f+2*k}, 16, v{XR+2*f+k}\nv_and_b32 v{HV+4*f+2*k+1}, 0xffff0000, v{XR+2*f+k}")
    for i in range(16): a(f"v_add_f32 v{HV+i}, v{HV+i}, v{ACC+i}")
    a(f"v_mov_b32 v14, v{HV}\nv_mul_f32 v15, v{HV}, v{HV}")
    for i in range(1, 16): a(f"v_add_f32 v14, v14, v{HV+i}\nv_fmac_f32 v15, v{HV+i}, v{HV+i}")
    for i in range(8): a(f"v_cvt_pk_bf16_f32 v{160+i}, v{HV+2*i}, v{HV+2*i+1}")
    a(f"s_mul_i32 s36, s40, 14\ns_lshl_b32 s37, s{sCG}, 1\ns_add_u32 s36, s36, s37\ns_lshl_b32 s36, s36, 10\ns_add_u32 s36, s36, {WS_H}\ns_add_u32 s37, s36, 1024")
    a(f"buffer_store_dwordx4 {v(160)}, v10, {s(SRD_WS)}, s36 offen sc1\nbuffer_store_dwordx4 {v(164)}, v10, {s(SRD_WS)}, s37 offen sc1")
    allred(a, 14, 13, "v_add_f32"); allred(a, 15, 13, "v_add_f32")
    a(f"v_lshlrev_b32 v13, 6, v1\ns_lshl_b32 s36, s40, 10\ns_lshl_b32 s37, s{sCG}, 3\ns_add_u32 s36, s36, s37\ns_add_u32 s36, s36, {WS_ST}")
    a("s_mov_b64 exec, 0xffff")
    a(f"buffer_store_dwordx2 v[14:15], v13, {s(SRD_WS)}, s36 offen sc1")
    a("s_mov_b64 exec, -1")
    a.label(done); a("s_endpgm")
    return a

def load_stats(a, dst, sT):
    a(f"v_and_b32 v13, 15, v1\nv_lshlrev_b32 v13, 6, v13\nv_lshrrev_b32 v14, 4, v1\nv_lshl_add_u32 v13, v14, 4, v13")
    a(f"s_lshl_b32 s36, s{sT}, 10\ns_add_u32 s36, s36, {WS_ST}")
    a(f"buffer_load_dwordx4 {v(dst)}, v13, {s(SRD_WS)}, s36 offen sc1")
def reduce_stats(a, d, need_var):
    a(f"v_mov_b32 v13, 0\nv_cndmask_b32 v{d+2}, v{d+2}, v13, s[64:65]\nv_cndmask_b32 v{d+3}, v{d+3}, v13, s[64:65]")
    a(f"v_add_f32 v{d}, v{d}, v{d+2}")
    allred(a, d, 13, "v_add_f32")
    a(f"v_mul_f32 v{d}, {f2h(1/448)}, v{d}")
    if need_var:
        a(f"v_add_f32 v{d+1}, v{d+1}, v{d+3}")
        allred(a, d+1, 13, "v_add_f32")
        a(f"v_mul_f32 v13, v{d}, v{d}\ns_mov_b32 s36, {f2h(1/448)}\nv_fma_f32 v13, v{d+1}, s36, -v13\nv_max_f32 v13, 0, v13\nv_add_f32 v13, {f2h(1e-5)}, v13\nv_rsq_f32 v{d+1}, v13")

def k3():
    a = Asm(); done = "K3_done"
    prologue(a, done)
    a(f"s_cmp_ge_u32 s{sM}, 14\ns_cbranch_scc1 {done}")
    a("v_lshlrev_b32 v10, 4, v1")
    a(f"s_mul_i32 s36, s{sM}, 114688\ns_mul_i32 s37, s{sW}, 28672\ns_add_u32 s36, s36, s37\ns_add_u32 s36, s36, {WS_W1P}")
    for i in range(28):
        a(f"s_add_u32 m0, s37, {i*1024}\ns_add_u32 s38, s36, {i*1024}\nbuffer_load_dwordx4 v10, {s(SRD_WS)}, s38 offen lds")
    a(f"s_lshl_b32 s40, s{sC}, 3\ns_lshl_b32 s37, s{sW}, 1\ns_add_u32 s40, s40, s37\ns_add_u32 s41, s40, 1")
    ST = 16
    load_stats(a, ST, 40); load_stats(a, ST+4, 41)
    HF = 24
    for t in range(2):
        a(f"s_mul_i32 s36, s{40+t}, 14336\ns_add_u32 s36, s36, {WS_H}")
        for st in range(14):
            a(f"s_add_u32 s37, s36, {st*1024}\nbuffer_load_dwordx4 {v(HF+(t*14+st)*4)}, v10, {s(SRD_WS)}, s37 offen sc1")
    for i in range(4): a(f"v_mov_b32 v{4+i}, 0x3f803f80")
    a("v_lshrrev_b32 v14, 4, v1\nv_cmp_eq_u32 s[64:65], 3, v14")
    a("s_waitcnt vmcnt(30)\ns_barrier")
    A = [136, 168]
    CS = 200
    LCS = 114688
    a(f"s_lshl_b32 s36, s{sW}, 11\nv_add_u32 v11, s36, v10\nv_add_u32 v12, 65536, v11")
    for st in range(14):
        for k in range(2): a(f"ds_read_b128 {v(A[0]+(st&1)*8+4*k)}, {'v11' if st < 8 else 'v12'} offset:{(st % 8)*8192 + k*1024}")
        a("s_waitcnt lgkmcnt(0)")
        for k in range(2): a(f"{MF} {v(CS+4*k)}, {v(A[0]+(st&1)*8+4*k)}, v[4:7], {'0' if st == 0 else v(CS+4*k)}")
    a(f"v_lshrrev_b32 v14, 4, v1\nv_lshlrev_b32 v14, 4, v14\ns_lshl_b32 s36, s{sW}, 7\ns_add_u32 s36, s36, {LCS}\nv_add_u32 v12, s36, v14")
    a(f"ds_write_b128 v12, {v(CS)}\nds_write_b128 v12, {v(CS+4)} offset:64")
    a("s_waitcnt lgkmcnt(0)\ns_barrier")
    a(f"v_add_u32 v12, {LCS}, v14")
    for f in range(8): a(f"ds_read_b128 {v(CS+4*f)}, v12 offset:{f*64}")
    a("s_waitcnt vmcnt(28) lgkmcnt(0)")
    reduce_stats(a, ST, False); reduce_stats(a, ST+4, False)
    ACC0 = 0
    for t in range(2):
        for f in range(8):
            for k in range(4):
                a(f"v_mul_f32 v13, v{ST+4*t}, v{CS+4*f+k}\nv_sub_f32 v13, 0, v13\nv_accvgpr_write_b32 a{(t*8+f)*4+k}, v13")
    a("v_add_u32 v11, 65536, v10")
    for f in range(8): a(f"ds_read_b128 {v(A[0]+4*f)}, v10 offset:{f*1024}")
    for st in range(14):
        if st < 13:
            for f in range(8): a(f"ds_read_b128 {v(A[(st+1)&1]+4*f)}, {'v10' if st+1 < 8 else 'v11'} offset:{((st+1) % 8)*8192 + f*1024}")
        a(f"s_waitcnt vmcnt({13-st}) lgkmcnt({8 if st < 13 else 0})")
        for f in range(8):
            for t in range(2):
                a(f"{MF} {ac((t*8+f)*4)}, {v(A[st&1]+4*f)}, {v(HF+(t*14+st)*4)}, {ac((t*8+f)*4)}")
    for t in range(2):
        for p in range(4):
            d = 16 + 4*((t*4+p) & 1)
            for k in range(8): a(f"v_accvgpr_read_b32 v{200+k}, a{(t*8+2*p)*4+k}")
            for k in range(4): a(f"v_cvt_pk_bf16_f32 v{d+k}, v{200+2*k}, v{200+2*k+1}\nv_pk_max_i16 v{d+k}, v{d+k}, 0")
            a(f"s_mul_i32 s36, s{40+t}, 56\ns_lshl_b32 s37, s{sM}, 2\ns_add_u32 s36, s36, s37\ns_add_u32 s36, s36, {p}\ns_lshl_b32 s36, s36, 10\ns_add_u32 s36, s36, {WS_HID}")
            a(f"buffer_store_dwordx4 {v(d)}, v10, {s(SRD_WS)}, s36 offen sc1")
    a.label(done); a("s_endpgm")
    return a

def k4():
    a = Asm(); done = "K4_done"
    prologue(a, done)
    a(f"s_cmp_ge_u32 s{sM}, 14\ns_cbranch_scc1 {done}")
    a("v_lshlrev_b32 v10, 4, v1")
    for i in range(14):
        half = i // 7
        a(f"s_mul_i32 s36, s{sW}, 7\ns_add_u32 s36, s36, {i % 7}\ns_lshr_b32 s37, s36, 1\ns_lshl_b32 s37, s37, 2\ns_and_b32 s36, s36, 1\ns_add_u32 s37, s37, s36\ns_add_u32 s{64+i}, s37, {2*half}")
    a(f"s_mul_i32 s38, s{sCG}, {56*4096}\ns_add_u32 s38, s38, {WS_W2P}")
    for i in range(14):
        a(f"s_lshl_b32 s36, s{64+i}, 12\ns_add_u32 s36, s36, s38")
        for f in range(4): a(f"buffer_load_dwordx4 {ac((i*4+f)*4)}, v10, {s(SRD_WS)}, s36 offen offset:{f*1024}")
    a(f"s_lshl_b32 s40, s{sC}, 3\ns_lshl_b32 s37, s{sRH}, 2\ns_add_u32 s40, s40, s37\ns_add_u32 s41, s40, s{sW}")
    a("s_waitcnt vmcnt(0)")
    ST = 16; load_stats(a, ST, 41)
    HR = 20
    a(f"s_mul_i32 s36, s41, 14\ns_lshl_b32 s37, s{sCG}, 1\ns_add_u32 s36, s36, s37\ns_lshl_b32 s36, s36, 10\ns_add_u32 s36, s36, {WS_H}\ns_add_u32 s37, s36, 1024")
    a(f"buffer_load_dwordx4 {v(HR)}, v10, {s(SRD_WS)}, s36 offen sc1\nbuffer_load_dwordx4 {v(HR+4)}, v10, {s(SRD_WS)}, s37 offen sc1")
    for u in range(4):
        a(f"s_add_u32 s36, s{sW}, {u}\ns_and_b32 s36, s36, 3\ns_mul_i32 s36, s36, 57344\nv_add_u32 v{4+u}, s36, v10")
    a(f"s_mul_i32 s38, s40, 57344\ns_add_u32 s38, s38, {WS_HID}")
    ACT = 32; NB = 7
    ACC = 160
    def issue(i):
        a(f"s_lshl_b32 s36, s{64+i}, 10\ns_add_u32 s36, s36, s38")
        for u in range(4): a(f"buffer_load_dwordx4 {v(ACT+((i % NB)*4+u)*4)}, v{4+u}, {s(SRD_WS)}, s36 offen sc1")
    for i in range(NB): issue(i)
    for i in range(14):
        outstanding_after = min(13, i + NB - 1) - i
        a(f"s_waitcnt vmcnt({4*outstanding_after})")
        for u in range(4):
            for f in range(4):
                a(f"{MF} {v(ACC+(u*4+f)*4)}, {ac((i*4+f)*4)}, {v(ACT+((i % NB)*4+u)*4)}, {'0' if i == 0 else v(ACC+(u*4+f)*4)}")
        if i + NB < 14: issue(i + NB)
    for u in range(1, 4):
        a(f"s_add_u32 s36, s{sW}, {u}\ns_and_b32 s36, s36, 3\ns_mul_i32 s36, s36, 12288\ns_add_u32 s36, s36, {(u-1)*4096}\nv_add_u32 v11, s36, v10")
        for f in range(4): a(f"ds_write_b128 v11, {v(ACC+(u*4+f)*4)} offset:{f*1024}")
    a("v_lshrrev_b32 v14, 4, v1\nv_cmp_eq_u32 s[64:65], 3, v14")
    reduce_stats(a, ST, True)
    a("s_waitcnt lgkmcnt(0)\ns_barrier")
    a(f"s_mul_i32 s36, s{sW}, 12288\nv_add_u32 v11, s36, v10")
    R = 32
    for k in range(12): a(f"ds_read_b128 {v(R+4*k)}, v11 offset:{k*1024}")
    HV = 96
    for p in range(2):
        for k in range(4):
            a(f"v_lshlrev_b32 v{HV+8*p+2*k}, 16, v{HR+4*p+k}\nv_and_b32 v{HV+8*p+2*k+1}, 0xffff0000, v{HR+4*p+k}")
    a("s_waitcnt lgkmcnt(0)")
    for sl in range(3):
        for i in range(16): a(f"v_add_f32 v{ACC+i}, v{ACC+i}, v{R+16*sl+i}")
    for i in range(16): a(f"v_fma_f32 v{ACC+i}, v{ACC+i}, v{ST+1}, v{HV+i}")
    D = 112
    for i in range(8): a(f"v_cvt_pk_bf16_f32 v{D+i}, v{ACC+2*i}, v{ACC+2*i+1}")
    for p in range(2):
        a(f"v_permlane16_swap_b32 v{D+4*p}, v{D+4*p+2}\nv_permlane16_swap_b32 v{D+4*p+1}, v{D+4*p+3}")
    a(f"v_and_b32 v13, 15, v1\ns_lshl_b32 s37, s41, 4\nv_add_u32 v13, s37, v13\ns_movk_i32 s38, 896\nv_mul_lo_u32 v13, v13, s38")
    a(f"v_bfe_u32 v14, v1, 4, 1\nv_lshl_add_u32 v13, v14, 5, v13\nv_lshrrev_b32 v14, 5, v1\nv_lshl_add_u32 v13, v14, 4, v13\ns_lshl_b32 s37, s{sCG}, 7\nv_add_u32 v13, s37, v13")
    for p in range(2): a(f"buffer_store_dwordx4 {v(D+4*p)}, v13, {s(SRD_OUT)}, 0 offen offset:{p*64}")
    a.label(done); a("s_endpgm")
    return a

def build():
    ks = [("k1_kernel", k1(), 163840, 256, 256), ("k2_kernel", k2(), 163840, 256, 256), ("k3_kernel", k3(), 163840, 512, 256), ("k4_kernel", k4(), 163840, 512, 256)]
    launches = []; bodies = []
    for name, a, lds, nv, acc in ks:
        lines, npad = hazard.pad(a.l)
        print(name, "instr lines", len(lines), "nop states", npad, file=sys.stderr)
        launches.append((name, (256,1,1), (256,1,1), lds))
        bodies.append((name, "\n".join(lines) + "\n", nv, 102, acc))
    return wrap(launches, bodies)
if __name__ == "__main__":
    out = sys.argv[1] if len(sys.argv) > 1 else "v1.s"
    open(out, "w").write(build())
```

```python
import struct, sys, math, argparse
from asmlib import *
import hazard
def f2h(x): return "0x%08x" % struct.unpack("<I", struct.pack("<f", x))[0]
WS_WOP, WS_W1P, WS_W2P = 0x000000, 0x080000, 0x210000
WS_O, WS_H, WS_ST, WS_FL, WS_HID, WS_SIZE = 0x400000, 0x600000, 0x7C0000, 0x7F0000, 0x800000, 0x1000000
WS_STAMP = 0xF80000
sW, sC, sM, sRH, sCG, sPJ = 3, 32, 33, 34, 35, 39
SRD_X, SRD_QKV, SRD_WS, SRD_OUT, SRD_P0, SRD_DBG = 8, 12, 16, 20, 24, 28
def v(b, n=4): return f"v[{b}:{b+n-1}]" if n > 1 else f"v{b}"
def ac(b, n=4): return f"a[{b}:{b+n-1}]" if n > 1 else f"a{b}"
def s(b, n=4): return f"s[{b}:{b+n-1}]" if n > 1 else f"s{b}"
MF = "v_mfma_f32_16x16x32_bf16"
SPIN_MAX = 300000
OPT = dict(stamps=False)

class VM:
    def __init__(self): self.ops = []
    def issue(self, tag, n=1): self.ops += [tag] * n
    def younger(self, tag):
        last = max(i for i, t in enumerate(self.ops) if t == tag)
        return len(self.ops) - 1 - last
    def wait(self, tag, extra=0):
        n = self.younger(tag) + extra
        assert n <= 63, (tag, n)
        return f"s_waitcnt vmcnt({n})"
class G(Asm):
    def __init__(self):
        super().__init__(); self.vm = VM(); self.nst = 0
    def emit(self, items):
        for x in items:
            if callable(x): x()
            else: self(x)
    def stamp(self, name):
        if not OPT["stamps"]: return
        i = self.nst; self.nst += 1
        self(f"s_memrealtime s[98:99]\ns_waitcnt lgkmcnt(0)\ns_mov_b32 s{76+i}, s98"); self.c(f"stamp {i} {name}")
    def cstamp(self):
        if not OPT["stamps"]: return
        i = self.nst; self.nst += 1
        self(f"s_memtime s[98:99]\ns_waitcnt lgkmcnt(0)\ns_mov_b32 s{76+i}, s98")
def merge(main, bg, first=0, every=1):
    out = []; bi = 0
    for i, x in enumerate(main):
        out.append(x)
        if i >= first and (i - first) % every == 0 and bi < len(bg): out.append(bg[bi]); bi += 1
    out += bg[bi:]
    return out
def srd(a, d, base, nbytes):
    a(f"s_mov_b32 s{d}, s{base}\ns_and_b32 s{d+1}, s{base+1}, 0xffff\ns_mov_b32 s{d+2}, {nbytes}\ns_mov_b32 s{d+3}, 0x20000")
def allred_ops(reg, tmp, op):
    return [f"v_mov_b32 v{tmp}, v{reg}", f"v_permlane32_swap_b32 v{tmp}, v{reg}", f"{op} v{reg}, v{reg}, v{tmp}",
            f"v_mov_b32 v{tmp}, v{reg}", f"v_permlane16_swap_b32 v{tmp}, v{reg}", f"{op} v{reg}, v{reg}, v{tmp}"]
def zip2(x, y):
    out = []
    for i in range(max(len(x), len(y))):
        if i < len(x): out.append(x[i])
        if i < len(y): out.append(y[i])
    return out

vL, vX0, vX, vXH, vW, vXR0, vXR1, vWR0, vWR1, vL16, vBG, vBV = 1, 2, 3, 4, 5, 6, 7, 8, 9, 10, 11, 12
SLOT = 30720; P0_LDS = 122880
XF = [20, 32]; WF = [44, 68]
accQ, accK, accV, csQ, csK, csV, RS, GR, ONES = 92, 108, 132, 156, 164, 172, 180, 192, 16
BP, BC, BP0 = 236, 240, 244
P0F = 204

def prologue(a):
    a("s_cmp_ge_u32 s2, 256\ns_cbranch_scc1 K_done")
    a("s_load_dwordx4 s[44:47], s[0:1], 0\ns_load_dwordx2 s[60:61], s[0:1], 64\ns_load_dwordx4 s[56:59], s[0:1], 48")
    a("s_load_dwordx2 s[48:49], s[0:1], 16\ns_load_dwordx4 s[52:55], s[0:1], 32")
    a(f"v_lshrrev_b32 v2, 6, v0\nv_and_b32 v{vL}, 63, v0")
    a(f"v_readfirstlane_b32 s{sW}, v2")
    a("s_and_b32 s36, s2, 7\ns_lshr_b32 s37, s2, 3")
    a(f"s_lshr_b32 s38, s37, 4\ns_lshl_b32 s36, s36, 1\ns_add_u32 s{sC}, s36, s38\ns_and_b32 s{sM}, s37, 15")
    a(f"s_lshl_b32 s36, s{sC}, 7\ns_sub_u32 s36, s36, 16\ns_lshl_b32 s37, s{sW}, 3\ns_add_u32 s36, s36, s37")
    a(f"v_lshrrev_b32 v13, 3, v{vL}\nv_add_u32 v13, s36, v13")
    a(f"s_and_b32 s37, s{sW}, 1\ns_lshl_b32 s37, s37, 2\nv_lshrrev_b32 v14, 4, v{vL}\nv_add_u32 v14, s37, v14\nv_and_b32 v15, 7, v{vL}\nv_xor_b32 v14, v14, v15\nv_lshlrev_b32 v14, 4, v14")
    a(f"s_movk_i32 s38, 896\nv_max_i32 v15, 0, v13\nv_mad_u32_u24 v{vX0}, v15, s38, v14")
    a(f"v_add_u32 v13, 32, v13\nv_mad_u32_u24 v{vX}, v13, s38, v14")
    a(f"s_lshl_b32 s36, s{sC}, 7\ns_add_u32 s36, s36, 112\ns_lshl_b32 s37, s{sW}, 2\ns_add_u32 s36, s36, s37")
    a(f"v_lshrrev_b32 v13, 3, v{vL}\nv_add_u32 v13, s36, v13")
    a(f"s_lshl_b32 s37, s{sW}, 1\nv_lshrrev_b32 v14, 4, v{vL}\nv_add_u32 v14, s37, v14\nv_and_b32 v14, 7, v14\nv_and_b32 v15, 7, v{vL}\nv_xor_b32 v14, v14, v15\nv_lshlrev_b32 v14, 4, v14\nv_mad_u32_u24 v{vXH}, v13, s38, v14")
    a(f"s_lshl_b32 s36, s{sW}, 4\nv_lshrrev_b32 v13, 2, v{vL}\nv_add_u32 v13, s36, v13\ns_movk_i32 s38, 2688")
    a(f"v_lshrrev_b32 v14, 5, v{vL}\nv_lshlrev_b32 v14, 1, v14\nv_and_b32 v15, 3, v{vL}\nv_xor_b32 v14, v14, v15\nv_lshlrev_b32 v14, 4, v14\nv_min_u32 v14, 40, v14")
    a(f"s_mul_i32 s36, s{sM}, 56\nv_mad_u32_u24 v13, v13, s38, v14\nv_add_u32 v{vW}, s36, v13")
    a(f"s_lshl_b32 s62, s{sW}, 10\ns_lshl_b32 s63, s{sW}, 9")
    a("s_waitcnt lgkmcnt(0)")
    srd(a, SRD_X, 44, 2048*896); srd(a, SRD_QKV, 46, 448*2688); srd(a, SRD_WS, 60, WS_SIZE)
def setup_rest():
    o = []
    def e(t): o.extend(x for x in t.split("\n") if x)
    e(f"s_mov_b32 s20, s56\ns_and_b32 s21, s57, 0xffff\ns_mov_b32 s22, {2048*896}\ns_mov_b32 s23, 0x20000")
    e(f"s_mov_b32 s28, s58\ns_and_b32 s29, s59, 0xffff\ns_mov_b32 s30, 256\ns_mov_b32 s31, 0x20000")
    e(f"s_cmp_ge_u32 s{sM}, 7\ns_cselect_b32 s{sRH}, 1, 0\ns_mul_i32 s36, s{sRH}, 7\ns_sub_u32 s{sCG}, s{sM}, s36")
    e(f"v_lshlrev_b32 v{vL16}, 4, v{vL}")
    e(f"v_and_b32 v13, 15, v{vL}\ns_lshl_b32 s36, s{sW}, 5\nv_add_u32 v14, s36, v13\nv_lshlrev_b32 v14, 7, v14")
    e(f"v_lshrrev_b32 v13, 1, v13\nv_lshrrev_b32 v15, 4, v{vL}\nv_xor_b32 v13, v13, v15\nv_lshl_add_u32 v{vXR0}, v13, 4, v14\nv_xor_b32 v13, 4, v13\nv_lshl_add_u32 v{vXR1}, v13, 4, v14")
    e(f"v_lshrrev_b32 v13, 4, v{vL}\nv_lshlrev_b32 v14, 3, v13\nv_bfe_u32 v15, v{vL}, 2, 2\nv_add_u32 v14, v14, v15\nv_lshlrev_b32 v14, 6, v14\nv_add_u32 v14, 18432, v14")
    e(f"v_and_b32 v13, 1, v13\nv_lshlrev_b32 v13, 1, v13\nv_bfe_u32 v15, v{vL}, 1, 1\nv_add_u32 v13, v13, v15")
    e(f"v_lshl_add_u32 v{vWR0}, v13, 4, v14\nv_xor_b32 v13, 2, v13\nv_lshl_add_u32 v{vWR1}, v13, 4, v14")
    e(f"v_and_b32 v13, 1, v{vL}\nv_lshl_add_u32 v{vWR0}, v13, 3, v{vWR0}\nv_xor_b32 v13, v13, v15\nv_lshl_add_u32 v{vWR1}, v13, 3, v{vWR1}")
    for i in range(4): e(f"v_mov_b32 v{ONES+i}, 0x3f803f80")
    e(f"v_and_b32 v13, 15, v{vL}\nv_lshrrev_b32 v15, 2, v13\nv_lshl_add_u32 v{vBG}, v15, 4, v13\nv_lshlrev_b32 v{vBG}, 2, v{vBG}")
    e(f"v_lshrrev_b32 v14, 4, v{vL}\nv_lshlrev_b32 v{vBV}, 4, v14\nv_cmp_eq_u32 s[64:65], 3, v14")
    e(f"v_and_b32 v15, 3, v{vL}\nv_cmp_eq_u32 s[66:67], 1, v15\nv_cmp_eq_u32 s[68:69], 2, v15\nv_cmp_eq_u32 s[70:71], 3, v15")
    e("v_lshlrev_b32 v14, 2, v14\nv_sub_u32 v13, v13, v14")
    e(f"v_mov_b32 v15, {f2h(-1e30)}\nv_mov_b32 v248, 0")
    for k in range(4):
        e(f"v_subrev_u32 v14, {k}, v13\nv_and_b32 v249, 0x80000001, v14\nv_cmp_eq_u32 vcc, 0, v249\nv_cndmask_b32 v{BC+k}, v15, v248, vcc")
        e(f"v_add_u32 v14, 1, v14\nv_and_b32 v249, 0x80000001, v14\nv_cmp_eq_u32 vcc, 0x80000001, v249\nv_cndmask_b32 v{BP+k}, v15, v248, vcc")
    e(f"s_or_b32 s36, s{sC}, s{sW}\ns_cmp_eq_u32 s36, 0\ns_cselect_b64 s[72:73], -1, 0")
    for k in range(4): e(f"v_cndmask_b32 v{BP0+k}, v{BP+k}, v15, s[72:73]")
    return o
def chunk_groups(a, q):
    slot = (q % 5) * SLOT
    def mk(txt):
        def f():
            a(txt); a.vm.issue(f"c{q}")
        return f
    g = []
    for jj in range(4):
        g.append(mk(f"s_add_u32 m0, s62, {slot + jj*4096}\ns_mov_b32 s46, {q*128 + (jj-1)*32*896 if jj else q*128}\nbuffer_load_dwordx4 v{vX if jj else vX0}, {s(SRD_X)}, s46 offen lds"))
    g.append(mk(f"s_add_u32 m0, s63, {slot + 16384}\ns_mov_b32 s46, {q*128}\ns_mov_b32 exec_hi, 0\nbuffer_load_dwordx4 v{vXH}, {s(SRD_X)}, s46 offen lds\ns_mov_b32 exec_hi, -1"))
    for mat in range(3):
        g.append(mk(f"s_add_u32 m0, s62, {slot + 18432 + mat*4096}\ns_mov_b32 s46, {q*64*2688 + mat*896}\nbuffer_load_dwordx4 v{vW}, {s(SRD_QKV)}, s46 offen lds"))
    return [g[5], g[0], g[6], g[1], g[7], g[2], g[3], g[4]]
def p1_reads(ks):
    st = ks; o = []
    xb = f"v{vXR0}" if ks == 0 else f"v{vXR1}"
    for tt in range(3): o.append(f"ds_read_b128 {v(XF[st] + 4*tt)}, {xb} offset:{tt*2048}")
    for mat in range(3):
        for t in range(2):
            for hf in range(2):
                o.append(f"ds_read_b64_tr_b16 {v(WF[st] + (mat*2+t)*4 + 2*hf, 2)}, v{vWR0 if t == 0 else vWR1} offset:{mat*4096 + ks*2048 + hf*256}")
    return o
def p1_mfma(ks, first):
    st = ks
    X = lambda tt: v(XF[st] + 4*tt); Wm = lambda m, t: v(WF[st] + (m*2+t)*4); O = v(ONES)
    o = []
    def mf(d, A, B): o.append(f"{MF} {v(d)}, {A}, {B}, {'0' if first else v(d)}")
    for tt in range(3): mf(RS + 4*tt, O, X(tt))
    for tt in range(3): mf(GR + 4*tt, X(tt), X(tt))
    for t in range(2):
        for q in range(2): mf(accQ + (q*2+t)*4, Wm(0, t), X(1+q))
        mf(csQ + 4*t, Wm(0, t), O)
    for t in range(2):
        for tt in range(3): mf(accK + (tt*2+t)*4, Wm(1, t), X(tt))
        mf(csK + 4*t, Wm(1, t), O)
    for t in range(2):
        for tt in range(3): mf(accV + (tt*2+t)*4, X(tt), Wm(2, t))
        mf(csV + 4*t, O, Wm(2, t))
    return o
def addr_step(q):
    d = (((q+1) % 5) - (q % 5)) * SLOT
    return [f"v_add_u32 v{rg}, {d & 0xffffffff}, v{rg}" for rg in (vXR0, vXR1, vWR0, vWR1)]

def p0_setup_block(a, blk, sidx):
    SR = SRD_P0 if blk == 0 else 4
    o = 40 + 4*blk if blk == 0 else 92
    L2, L3, LE = a.newlabel("P0b"), a.newlabel("P0c"), a.newlabel("P0e")
    a(f"s_cmp_ge_u32 s{sidx}, 392\ns_cbranch_scc1 {L2}")
    a(f"s_mul_hi_u32 s37, s{sidx}, 0x0924924a\ns_mul_i32 s38, s37, 28\ns_sub_u32 s38, s{sidx}, s38")
    srd(a, SR, 52, 448*3584)
    a(f"s_movk_i32 s{o}, 3584\ns_lshr_b32 s36, s38, 1\ns_and_b32 s38, s38, 1")
    a(f"s_mul_i32 s{o+1}, s36, 32*3584\ns_lshl_b32 s74, s37, 8\ns_add_u32 s{o+1}, s{o+1}, s74\ns_lshl_b32 s74, s38, 7\ns_add_u32 s{o+1}, s{o+1}, s74")
    a(f"s_mul_i32 s74, s37, 14\ns_add_u32 s74, s74, s36\ns_lshl_b32 s74, s74, 3\ns_lshl_b32 s38, s38, 2\ns_add_u32 s74, s74, s38")
    a(f"s_lshl_b32 s{o+2}, s74, 10\ns_add_u32 s{o+2}, s{o+2}, {WS_W1P}\ns_mov_b32 s{o+3}, 0\ns_branch {LE}")
    a.label(L2)
    a(f"s_cmp_ge_u32 s{sidx}, 784\ns_cbranch_scc1 {L3}")
    a(f"s_sub_u32 s36, s{sidx}, 392\ns_mul_hi_u32 s37, s36, 0x04924925\ns_mul_i32 s38, s37, 56\ns_sub_u32 s38, s36, s38")
    srd(a, SR, 54, 1792*896)
    a(f"s_movk_i32 s{o}, 896\ns_mul_i32 s{o+1}, s38, 32*896\ns_lshl_b32 s74, s37, 7\ns_add_u32 s{o+1}, s{o+1}, s74")
    a(f"s_mul_i32 s74, s37, 56\ns_add_u32 s74, s74, s38\ns_lshl_b32 s{o+2}, s74, 12\ns_add_u32 s{o+2}, s{o+2}, {WS_W2P}\ns_mov_b32 s{o+3}, 0\ns_branch {LE}")
    a.label(L3)
    a(f"s_sub_u32 s36, s{sidx}, 784\ns_lshr_b32 s37, s36, 4\ns_and_b32 s38, s36, 15")
    srd(a, SR, 48, 448*896)
    a(f"s_movk_i32 s{o}, 896\ns_mul_i32 s{o+1}, s38, 28*896\ns_lshl_b32 s74, s37, 7\ns_add_u32 s{o+1}, s{o+1}, s74")
    a(f"s_lshl_b32 s{o+2}, s36, 12\ns_add_u32 s{o+2}, s{o+2}, {WS_WOP}\ns_mov_b32 s{o+3}, 1")
    a.label(LE)
def p0_issue(a):
    a(f"s_mul_i32 s75, s{sC}, 7\ns_add_u32 s75, s75, s{sPJ}\ns_lshl_b32 s96, s75, 3\ns_lshl_b32 s36, s{sW}, 1\ns_add_u32 s96, s96, s36\ns_add_u32 s97, s96, 1")
    p0_setup_block(a, 0, 96); p0_setup_block(a, 1, 97)
    for blk, (SR, o) in enumerate(((SRD_P0, 40), (4, 92))):
        a(f"v_lshrrev_b32 v13, 3, v{vL}\nv_and_b32 v14, 7, v{vL}\nv_lshlrev_b32 v14, 4, v14\nv_mad_u32_u24 v13, v13, s{o}, v14")
        a(f"s_lshl_b32 s36, s{sW}, 13\ns_lshl_b32 s38, s{o}, 3\ns_mov_b32 s37, s{o+1}")
        for i in range(4):
            a(f"s_add_u32 m0, s36, {P0_LDS + blk*4096 + i*1024}")
            a("s_add_u32 s37, s37, s38" if i else "s_nop 0")
            a(f"buffer_load_dwordx4 v13, {s(SR)}, s37 offen lds")
def p0_finish(a):
    a(f"v_lshrrev_b32 v13, 4, v{vL}\nv_lshlrev_b32 v13, 2, v13\nv_bfe_u32 v14, v{vL}, 2, 2\nv_add_u32 v13, v13, v14\nv_lshlrev_b32 v13, 7, v13")
    a(f"v_and_b32 v14, 3, v{vL}\nv_lshl_add_u32 v13, v14, 3, v13\ns_lshl_b32 s36, s{sW}, 13\ns_add_u32 s36, s36, {P0_LDS}\nv_add_u32 v13, s36, v13")
    for blk in range(2):
        for f in range(4):
            for hf in range(2):
                a(f"ds_read_b64_tr_b16 {v(P0F + 16*blk + 4*f + 2*hf, 2)}, v13 offset:{blk*4096 + f*32 + hf*2048}")
        if blk == 0: a("s_waitcnt lgkmcnt(4)")
    a("s_waitcnt lgkmcnt(0)")
    for blk, o in enumerate((40, 92)):
        L = a.newlabel("P0z")
        a(f"s_cmp_eq_u32 s{o+3}, 0\ns_cbranch_scc1 {L}")
        a("s_mov_b32 exec_lo, 0\ns_mov_b32 exec_hi, 0xffff0000")
        for f in range(4): a(f"v_mov_b32 v{P0F+16*blk+4*f+2}, 0\nv_mov_b32 v{P0F+16*blk+4*f+3}, 0")
        a("s_mov_b64 exec, -1")
        a.label(L)
        for f in range(4):
            a(f"s_add_u32 s36, s{o+2}, {f*1024}")
            a(f"buffer_store_dwordx4 {v(P0F+16*blk+4*f)}, v{vL16}, {s(SRD_WS)}, s36 offen sc1")
def p0_flags(a):
    LB, LE = a.newlabel("PFb"), a.newlabel("PFe")
    a(f"s_cmp_ge_u32 s75, 49\ns_cbranch_scc1 {LB}")
    for which in (0, 7):
        a(f"s_lshl_b32 s36, s75, 3\ns_add_u32 s36, s36, {which}\ns_mul_hi_u32 s37, s36, 0x0924924a")
        a(f"s_mul_i32 s38, s37, 7\ns_lshr_b32 s38, s38, 1\ns_sub_u32 s38, s75, s38\ns_lshl_b32 s38, s38, 2\ns_lshl_b32 s37, s37, 9\ns_add_u32 s37, s37, s38\ns_add_u32 s{40+(which>0)}, s37, {WS_FL+256}")
    a(f"s_branch {LE}")
    a.label(LB)
    L3, L4 = a.newlabel("PFc"), a.newlabel("PFd")
    a(f"s_cmp_ge_u32 s75, 98\ns_cbranch_scc1 {L3}")
    a("s_sub_u32 s36, s75, 49\ns_mul_hi_u32 s37, s36, 0x24924925\ns_mul_i32 s38, s37, 7\ns_sub_u32 s38, s36, s38")
    a(f"s_branch {L4}")
    a.label(L3)
    a("s_sub_u32 s36, s75, 98\ns_lshr_b32 s37, s36, 1\ns_and_b32 s38, s36, 1\ns_add_u32 s38, s38, 7")
    a.label(L4)
    a(f"s_lshl_b32 s38, s38, 2\ns_lshl_b32 s37, s37, 9\ns_add_u32 s37, s37, s38\ns_add_u32 s40, s37, {WS_FL+320}\ns_mov_b32 s41, s40")
    a.label(LE)
    a(f"v_mov_b32 v13, 0\nv_mov_b32 v14, 1\ns_mov_b64 exec, 1\nbuffer_store_dword v14, v13, {s(SRD_WS)}, s40 offen sc1\nbuffer_store_dword v14, v13, {s(SRD_WS)}, s41 offen sc1\ns_mov_b64 exec, -1")

def spin(a, reload, cmpins, name):
    Ll, Lok = a.newlabel(name + "l"), a.newlabel(name + "k")
    a("s_mov_b32 s38, 0")
    a.label(Ll)
    a(f"{cmpins}\ns_cbranch_vccz {Lok}")
    a(f"s_sleep 1\n{reload}\ns_waitcnt vmcnt(0)")
    a(f"s_add_u32 s38, s38, 1\ns_cmp_lt_u32 s38, {SPIN_MAX}\ns_cbranch_scc1 {Ll}")
    a.label(Lok)
def only_wave(a, w, body):
    L = a.newlabel("OW")
    a(f"s_cmp_lg_u32 s{sW}, {w}\ns_cbranch_scc1 {L}")
    body()
    a.label(L)
def signal(a, off):
    def b():
        a(f"s_lshl_b32 s36, s{sC}, 9\ns_lshl_b32 s37, s{sM}, 2\ns_add_u32 s36, s36, s37\ns_add_u32 s36, s36, {WS_FL + off}")
        a(f"v_mov_b32 v13, 0\nv_mov_b32 v14, 1\ns_mov_b64 exec, 1\nbuffer_store_dword v14, v13, {s(SRD_WS)}, s36 offen sc1\ns_mov_b64 exec, -1")
    only_wave(a, 0, b)
def poll(a, off, n, wave):
    def b():
        a(f"v_min_u32 v13, {n-1}, v{vL}\nv_lshlrev_b32 v13, 2, v13\ns_lshl_b32 s37, s{sC}, 9\ns_add_u32 s37, s37, {WS_FL + off}")
        ld = f"buffer_load_dword v14, v13, {s(SRD_WS)}, s37 offen sc1"
        a(ld + "\ns_waitcnt vmcnt(0)")
        Ll, Lok = a.newlabel("PLl"), a.newlabel("PLk")
        a("s_mov_b32 s38, 0")
        a.label(Ll)
        a(f"v_cmp_ne_u32 vcc, 1, v14\ns_cbranch_vccz {Lok}")
        a(f"{ld}\ns_waitcnt vmcnt(0)")
        a(f"s_add_u32 s38, s38, 1\ns_cmp_lt_u32 s38, {SPIN_MAX}\ns_cbranch_scc1 {Ll}")
        a.label(Lok)
    only_wave(a, wave, b)

def p1(a):
    vm = a.vm
    prologue(a)
    a.stamp("start"); a.cstamp()
    tab = 0
    mem = {3: 0, 5: 1, 7: 2, 8: 3, 10: 4, 12: 5, 14: 6}
    for m in range(16): tab |= mem.get(m, 15) << (4*m)
    a(f"s_mov_b32 s36, {tab & 0xffffffff}\ns_mov_b32 s37, {tab >> 32}\ns_lshl_b32 s38, s{sM}, 2\ns_lshr_b64 s[36:37], s[36:37], s38\ns_and_b32 s{sPJ}, s36, 15")
    def zero():
        a(f"v_lshlrev_b32 v13, 4, v{vL}\nv_mov_b32 v16, 0\nv_mov_b32 v17, 0\nv_mov_b32 v18, 0\nv_mov_b32 v19, 0\ns_lshl_b32 s36, s{sC}, 9\ns_add_u32 s36, s36, {WS_FL}")
        a(f"s_mov_b64 exec, 0xffffff\nbuffer_store_dwordx4 v[16:19], v13, {s(SRD_WS)}, s36 offen sc1\ns_mov_b64 exec, -1")
    L = a.newlabel("LZ")
    a(f"s_or_b32 s36, s{sM}, s{sW}\ns_cmp_lg_u32 s36, 0\ns_cbranch_scc1 {L}")
    zero()
    a.label(L)
    L = a.newlabel("P0i")
    a(f"s_cmp_eq_u32 s{sPJ}, 15\ns_cbranch_scc1 {L}")
    p0_issue(a)
    a.label(L)
    rest = setup_rest()
    g = chunk_groups(a, 0) + chunk_groups(a, 1)
    per = (len(rest) + 15) // 16
    for i, f in enumerate(g):
        f()
        for x in rest[i*per:(i+1)*per]: a(x)
    L = a.newlabel("LH")
    a(f"s_or_b32 s36, s{sM}, s{sW}\ns_cmp_lg_u32 s36, 0\ns_cbranch_scc1 {L}")
    a(f"s_waitcnt vmcnt(16)\ns_lshl_b32 s36, s{sC}, 2\nv_mov_b32 v13, s36\nv_mov_b32 v14, 1\ns_mov_b64 exec, 1\nbuffer_store_dword v14, v13, {s(SRD_DBG)}, 0 offen sc1\ns_mov_b64 exec, -1")
    a.label(L)
    for f in chunk_groups(a, 2): f()
    a.stamp("3 chunks issued")
    a(vm.wait("c0")); a("s_barrier")
    a.stamp("c0 landed")
    for x in p1_reads(0): a(x)
    for q in range(7):
        bg = chunk_groups(a, q + 3) if q + 3 <= 6 else []
        if q == 6:
            a(f"s_min_u32 s38, s{sCG}, 6\ns_lshl_b32 s40, s38, 16\ns_lshl_b32 s41, s{sW}, 14\ns_add_u32 s40, s40, s41\ns_add_u32 s40, s40, {WS_WOP}\ns_add_u32 s41, s41, {LWO}")
            def mkwo(i):
                def f():
                    a(f"s_add_u32 m0, s41, {i*1024}\ns_add_u32 s46, s40, {i*1024}\nbuffer_load_dwordx4 v{vL16}, {s(SRD_WS)}, s46 offen lds"); vm.issue("wo")
                return f
            bg = [mkwo(i) for i in range(16)]
        a("s_waitcnt lgkmcnt(0)")
        m0 = merge(p1_mfma(0, q == 0), p1_reads(1), first=0, every=1)
        nb0 = min(len(bg), 4 if q < 6 else 8)
        a.emit(merge(m0, bg[:nb0], first=4, every=(10 if q < 6 else 5)))
        bg = bg[nb0:]
        a("s_waitcnt lgkmcnt(0)")
        m1 = p1_mfma(1, False)
        if q == 0:
            L = a.newlabel("P0f")
            a(f"s_cmp_eq_u32 s{sPJ}, 15\ns_cbranch_scc1 {L}")
            p0_finish(a)
            a.label(L)
        if q == 1:
            def hp(): a(f"v_and_b32 v14, 15, v{vL}\nv_lshlrev_b32 v14, 2, v14\nbuffer_load_dword v15, v14, {s(SRD_DBG)}, 0 offen sc1")
            only_wave(a, 0, hp)
            hs_mark = len(vm.ops)
        if q == 4:
            a(f"s_min_u32 s36, s{sM}, 13\ns_lshl_b32 s36, s36, 9\ns_add_u32 s36, s36, 256\ns_min_u32 s37, s{sCG}, 6\ns_lshl_b32 s37, s37, 9\ns_add_u32 s37, s37, 320-16")
            a(f"v_min_u32 v250, 12, v{vL}\nv_lshlrev_b32 v250, 2, v250\nv_mov_b32 v14, s36\nv_mov_b32 v251, s37\nv_cmp_gt_u32 vcc, 16, v250\nv_cndmask_b32 v14, v251, v14, vcc\nv_add_u32 v250, v250, v14")
            def sp():
                a(f"s_mov_b32 s36, {WS_FL}\nbuffer_load_dword v15, v250, {s(SRD_WS)}, s36 offen sc1")
            only_wave(a, 0, sp)
        if q < 6:
            head = m1[:8]; tail = m1[8:]
            nb1 = min(len(bg), 1)
            a.emit(merge(head, bg[:nb1], first=4, every=4)); bg = bg[nb1:]
            if q in (0, 1):
                LA, LB = a.newlabel("WA"), a.newlabel("WB")
                a(f"s_cmp_eq_u32 s{sPJ}, 15\ns_cbranch_scc1 {LA}\n{vm.wait(f'c{q+1}', 8)}\ns_branch {LB}")
                a.label(LA); a(vm.wait(f"c{q+1}")); a.label(LB)
            else:
                a(vm.wait(f"c{q+1}"))
            if q == 2:
                def hc(): spin(a, f"buffer_load_dword v15, v14, {s(SRD_DBG)}, 0 offen sc1", "v_cmp_ne_u32 vcc, 1, v15", "HS")
                def hc2():
                    a(f"s_waitcnt vmcnt({len(vm.ops) - hs_mark})\nv_and_b32 v14, 15, v{vL}\nv_lshlrev_b32 v14, 2, v14"); hc()
                only_wave(a, 0, hc2)
            if q == 5:
                def sc():
                    a(f"s_mov_b32 s37, {WS_FL}")
                    spin(a, f"buffer_load_dword v15, v250, {s(SRD_WS)}, s37 offen sc1", "v_cmp_ne_u32 vcc, 1, v15", "S0")
                only_wave(a, 0, sc)
            a("s_barrier")
            if q in (2, 5): a.stamp(f"c{q+1} landed")
            if q == 2:
                L = a.newlabel("P0s")
                a(f"s_cmp_eq_u32 s{sPJ}, 15\ns_cbranch_scc1 {L}\ns_cmp_lg_u32 s{sW}, 0\ns_cbranch_scc1 {L}")
                p0_flags(a)
                a.label(L)
            for x in addr_step(q): a(x)
            t2 = merge(tail, p1_reads(0), first=0, every=1)
            a.emit(merge(t2, bg, first=3, every=8))
        else:
            a.emit(merge(m1, bg, first=1, every=3))
    a("s_barrier")
    a.stamp("P1 loop end")
LWO = 98304

def p1_epilogue(a, bgl):
    o = []
    def e(t): o.extend(x for x in t.split("\n") if x)
    MEAN = [204, 206, 208]; RSTD = [210, 212, 214]; SQ = [205, 207, 209]
    MV, RV = 20, 32
    for tt in range(3):
        g = GR + 4*tt
        e(f"v_cndmask_b32 v{SQ[tt]}, v{g}, v{g+1}, s[66:67]\nv_cndmask_b32 v{SQ[tt]}, v{SQ[tt]}, v{g+2}, s[68:69]\nv_cndmask_b32 v{SQ[tt]}, v{SQ[tt]}, v{g+3}, s[70:71]")
        e(f"ds_bpermute_b32 v{SQ[tt]}, v{vBG}, v{SQ[tt]}")
        e(f"v_mul_f32 v{MEAN[tt]}, {f2h(1/448)}, v{RS+4*tt}")
    for tt in range(3):
        for k in range(4): e(f"ds_bpermute_b32 v{MV+4*tt+k}, v{vBV}, v{MEAN[tt]} offset:{4*k}")
    def pkfma_negb(d, bc, cs): return f"v_pk_fma_f32 {v(d,2)}, {v(bc,2)}, {v(cs,2)}, {v(d,2)} op_sel_hi:[0,1,1] neg_lo:[1,0,0] neg_hi:[1,0,0]"
    def pkmul_b(d, bc): return f"v_pk_mul_f32 {v(d,2)}, {v(bc,2)}, {v(d,2)} op_sel_hi:[0,1]"
    for tt in range(3):
        for t in range(2):
            b = accK + (tt*2+t)*4
            e(pkfma_negb(b, MEAN[tt], csK+4*t)); e(pkfma_negb(b+2, MEAN[tt], csK+4*t+2))
    e("s_waitcnt lgkmcnt(12)")
    e(f"s_mov_b32 s36, {f2h(1/448)}")
    for tt in range(3): e(f"v_mul_f32 v{216+tt}, v{MEAN[tt]}, v{MEAN[tt]}")
    for tt in range(3): e(f"v_fma_f32 v{216+tt}, v{SQ[tt]}, s36, -v{216+tt}")
    for tt in range(3): e(f"v_max_f32 v{216+tt}, 0, v{216+tt}")
    for tt in range(3): e(f"v_add_f32 v{216+tt}, {f2h(1e-5)}, v{216+tt}")
    for tt in range(3): e(f"v_rsq_f32 v{RSTD[tt]}, v{216+tt}")
    for q in range(2):
        for t in range(2):
            b = accQ + (q*2+t)*4
            e(pkfma_negb(b, MEAN[1+q], csQ+4*t)); e(pkfma_negb(b+2, MEAN[1+q], csQ+4*t+2))
    for tt in range(3):
        for k in range(4): e(f"ds_bpermute_b32 v{RV+4*tt+k}, v{vBV}, v{RSTD[tt]} offset:{4*k}")
    KF, QF, VP = 44, 56, 64
    sc = 28 ** -0.5 * math.log2(math.e)
    RQ = [216, 218, 220, 222]
    for q in range(2):
        e(f"v_mul_f32 v{RQ[2*q]}, {f2h(sc)}, v{RSTD[1+q]}")
        e(f"v_cndmask_b32 v{RQ[2*q+1]}, v{RQ[2*q]}, 0, s[64:65]")
    for tt in range(3):
        for t in range(2):
            b = accK + (tt*2+t)*4
            e(pkmul_b(b, RSTD[tt])); e(pkmul_b(b+2, RSTD[tt]))
            e(f"v_cvt_pk_bf16_f32 v{KF+4*tt+2*t}, v{b}, v{b+1}\nv_cvt_pk_bf16_f32 v{KF+4*tt+2*t+1}, v{b+2}, v{b+3}")
    for q in range(2):
        for t in range(2):
            b = accQ + (q*2+t)*4
            e(pkmul_b(b, RQ[2*q+t])); e(pkmul_b(b+2, RQ[2*q+t]))
            e(f"v_cvt_pk_bf16_f32 v{QF+4*q+2*t}, v{b}, v{b+1}\nv_cvt_pk_bf16_f32 v{QF+4*q+2*t+1}, v{b+2}, v{b+3}")
    S = [92, 100]; PP = [108, 112]; OO = [116, 124]; OUT = [76, 80]
    for q in range(2):
        e(f"{MF} {v(S[q])}, {v(KF+4*q)}, {v(QF+4*q)}, {v(BP0 if q == 0 else BP)}")
        e(f"{MF} {v(S[q]+4)}, {v(KF+4*(q+1))}, {v(QF+4*q)}, {v(BC)}")
    e("s_waitcnt lgkmcnt(0)")
    for tt in range(3):
        for t in range(2):
            b = accV + (tt*2+t)*4
            for h in (0, 2):
                e(f"v_pk_fma_f32 {v(b+h,2)}, {v(MV+4*tt+h,2)}, {v(csV+4*t,2)}, {v(b+h,2)} op_sel_hi:[1,0,1] neg_lo:[1,0,0] neg_hi:[1,0,0]")
                e(f"v_pk_mul_f32 {v(b+h,2)}, {v(b+h,2)}, {v(RV+4*tt+h,2)}")
            e(f"v_cvt_pk_bf16_f32 v{VP+6*t+2*tt}, v{b}, v{b+1}\nv_cvt_pk_bf16_f32 v{VP+6*t+2*tt+1}, v{b+2}, v{b+3}")
    def soft(q):
        r = []; S0 = S[q]; m = 216 + 4*q; t = m + 1
        r += [f"v_max3_f32 v{m}, v{S0}, v{S0+1}, v{S0+2}", f"v_max3_f32 v{m}, v{m}, v{S0+3}, v{S0+4}", f"v_max3_f32 v{m}, v{m}, v{S0+5}, v{S0+6}", f"v_max_f32 v{m}, v{m}, v{S0+7}"]
        r += allred_ops(m, t, "v_max_f32")
        for k in range(0, 8, 2): r.append(f"v_pk_add_f32 {v(S0+k,2)}, {v(S0+k,2)}, {v(m,2)} op_sel_hi:[1,0] neg_lo:[0,1] neg_hi:[0,1]")
        for k in range(8): r.append(f"v_exp_f32 v{S0+k}, v{S0+k}")
        r += [f"v_pk_add_f32 {v(m+2,2)}, {v(S0,2)}, {v(S0+2,2)}", f"v_pk_add_f32 {v(m,2)}, {v(S0+4,2)}, {v(S0+6,2)}",
              f"v_pk_add_f32 {v(m,2)}, {v(m,2)}, {v(m+2,2)}", f"v_add_f32 v{m}, v{m}, v{m+1}"]
        r += allred_ops(m, t, "v_add_f32")
        r.append(f"v_rcp_f32 v{m}, v{m}")
        for k in range(0, 8, 2): r.append(f"v_pk_mul_f32 {v(S0+k,2)}, {v(S0+k,2)}, {v(m,2)} op_sel_hi:[1,0]")
        for k in range(4): r.append(f"v_cvt_pk_bf16_f32 v{PP[q]+k}, v{S0+2*k}, v{S0+2*k+1}")
        for tq in range(2): r.append(f"{MF} {v(OO[q]+4*tq)}, {v(VP+6*tq+2*q)}, {v(PP[q])}, 0")
        return r
    o += zip2(soft(0), soft(1))
    for q in range(2):
        for k in range(4): e(f"v_cvt_pk_bf16_f32 v{OUT[q]+k}, v{OO[q]+2*k}, v{OO[q]+2*k+1}")
    n = len(o); every = max(1, n // (len(bgl) + 1))
    a.emit(merge(o, bgl, first=2, every=every))
    a(f"s_lshl_b32 s36, s{sC}, 3\ns_lshl_b32 s37, s{sW}, 1\ns_add_u32 s36, s36, s37\ns_lshl_b32 s36, s36, 4\ns_add_u32 s36, s36, s{sM}\ns_lshl_b32 s36, s36, 10\ns_add_u32 s36, s36, {WS_O}\ns_add_u32 s37, s36, 16384")
    a(f"buffer_store_dwordx4 {v(OUT[0])}, v{vL16}, {s(SRD_WS)}, s36 offen sc1\nbuffer_store_dwordx4 {v(OUT[1])}, v{vL16}, {s(SRD_WS)}, s37 offen sc1")
    a.vm.issue("ost", 2)

def load_stats(a, dst, sT, tag):
    a(f"s_lshl_b32 s36, s{sT}, 10\ns_add_u32 s36, s36, {WS_ST}")
    a(f"buffer_load_dwordx4 {v(dst)}, v12, {s(SRD_WS)}, s36 offen sc1"); a.vm.issue(tag)
def reduce_stats_ops(d, tmp, need_var):
    o = [f"v_cndmask_b32 v{d+2}, v{d+2}, 0, s[64:65]", f"v_add_f32 v{d}, v{d}, v{d+2}"]
    o += allred_ops(d, tmp, "v_add_f32")
    o.append(f"v_mul_f32 v{d}, {f2h(1/448)}, v{d}")
    if need_var:
        o += [f"v_cndmask_b32 v{d+3}, v{d+3}, 0, s[64:65]", f"v_add_f32 v{d+1}, v{d+1}, v{d+3}"]
        o += allred_ops(d+1, tmp, "v_add_f32")
        o += [f"v_mul_f32 v{tmp}, v{d}, v{d}", f"s_mov_b32 s36, {f2h(1/448)}", f"v_fma_f32 v{tmp}, v{d+1}, s36, -v{tmp}", f"v_max_f32 v{tmp}, 0, v{tmp}",
              f"v_add_f32 v{tmp}, {f2h(1e-5)}, v{tmp}", f"v_rsq_f32 v{d+1}, v{tmp}"]
    return o

def build_kernel():
    a = G(); vm = a.vm
    p1(a)
    a(f"s_min_u32 s38, s{sM}, 13\ns_mul_i32 s40, s38, 114688\ns_mul_i32 s41, s{sW}, 24576\ns_add_u32 s40, s40, s41\ns_add_u32 s40, s40, {WS_W1P}")
    def mkw1(i, tag, sb=40, sl=41):
        def f():
            a(f"s_add_u32 m0, s{sl}, {i*1024}\ns_add_u32 s46, s{sb}, {i*1024}\nbuffer_load_dwordx4 v{vL16}, {s(SRD_WS)}, s46 offen lds"); vm.issue(tag)
        return f
    w1a = [mkw1(i, "w1a") for i in range(24)]
    p1_epilogue(a, w1a[:18])
    a.stamp("o stores issued")
    for f in w1a[18:]: f()
    for i in range(14):
        half = i // 7
        a(f"s_mul_i32 s36, s{sW}, 7\ns_add_u32 s36, s36, {i % 7}\ns_lshr_b32 s37, s36, 1\ns_lshl_b32 s37, s37, 2\ns_and_b32 s36, s36, 1\ns_add_u32 s37, s37, s36\ns_add_u32 s{50+i}, s37, {2*half}")
    a(f"s_min_u32 s38, s{sCG}, 6\ns_mul_i32 s74, s38, {56*4096}\ns_add_u32 s74, s74, {WS_W2P}")
    def mkw2(j):
        i, f_ = divmod(j, 4)
        def f():
            if f_ == 0: a(f"s_lshl_b32 s75, s{50+i}, 12\ns_add_u32 s75, s75, s74")
            a(f"buffer_load_dwordx4 {ac((i*4+f_)*4)}, v{vL16}, {s(SRD_WS)}, s75 offen offset:{f_*1024}"); vm.issue("w2")
        return f
    w2 = [mkw2(j) for j in range(56)]
    NW2A = 8
    for f in w2[:NW2A]: f()
    a(vm.wait("ost")); a("s_barrier")
    a.stamp("P1 stores drained")
    signal(a, 0)
    a(f"s_cmp_ge_u32 s{sM}, 14\ns_cbranch_scc1 K_tail")
    a(f"s_lshl_b32 s40, s{sC}, 3\ns_lshl_b32 s37, s{sRH}, 2\ns_add_u32 s40, s40, s37\ns_add_u32 s40, s40, s{sW}")
    a(f"v_and_b32 v13, 15, v{vL}\ns_lshl_b32 s37, s40, 4\nv_add_u32 v13, s37, v13\ns_movk_i32 s38, 896\nv_lshrrev_b32 v14, 4, v{vL}\nv_lshlrev_b32 v14, 3, v14\nv_mad_u32_u24 v13, v13, s38, v14\ns_lshl_b32 s37, s{sCG}, 7\nv_add_u32 v13, s37, v13")
    XR = 16; ACC = 128
    for f in range(4):
        a(f"buffer_load_dwordx2 {v(XR+2*f, 2)}, v13, {s(SRD_X)}, 0 offen offset:{f*32}"); vm.issue("xr")
    a(vm.wait("xr"))
    for f in range(4):
        for k in range(2):
            a(f"v_lshlrev_b32 v{ACC+4*f+2*k}, 16, v{XR+2*f+k}\nv_and_b32 v{ACC+4*f+2*k+1}, 0xffff0000, v{XR+2*f+k}")
    a(f"v_add_u32 v11, {LWO}, v{vL16}")
    A = [96, 112]
    for f in range(4): a(f"ds_read_b128 {v(A[0]+4*f)}, v11 offset:{f*1024}")
    a(f"s_lshl_b32 s41, s40, 14\ns_add_u32 s41, s41, {WS_O}")
    poll(a, 0, 16, 0)
    a("s_barrier")
    a.stamp("S1 passed")
    OF = 32
    def mko(h):
        def f():
            a(f"s_add_u32 s37, s41, {h*1024}\nbuffer_load_dwordx4 {v(OF+4*h)}, v{vL16}, {s(SRD_WS)}, s37 offen sc1"); vm.issue(f"o{h}")
        return f
    for h in range(16): mko(h)()
    for h in range(16):
        if h < 15:
            for f in range(4): a(f"ds_read_b128 {v(A[(h+1)&1]+4*f)}, v11 offset:{((h+1)*4+f)*1024}")
        a(f"s_waitcnt vmcnt({vm.younger(f'o{h}')}) lgkmcnt({4 if h < 15 else 0})")
        for f in range(4): a(f"{MF} {v(ACC+4*f)}, {v(A[h&1]+4*f)}, {v(OF+4*h)}, {v(ACC+4*f)}")
    HR = 240
    ops = []
    for i in range(8): ops.append(f"v_cvt_pk_bf16_f32 v{HR+i}, v{ACC+2*i}, v{ACC+2*i+1}")
    a.emit(ops)
    a(f"s_mul_i32 s36, s40, 14\ns_lshl_b32 s37, s{sCG}, 1\ns_add_u32 s36, s36, s37\ns_lshl_b32 s36, s36, 10\ns_add_u32 s36, s36, {WS_H}\ns_add_u32 s37, s36, 1024")
    a(f"buffer_store_dwordx4 {v(HR)}, v{vL16}, {s(SRD_WS)}, s36 offen sc1\nbuffer_store_dwordx4 {v(HR+4)}, v{vL16}, {s(SRD_WS)}, s37 offen sc1"); vm.issue("hst", 2)
    a(f"v_pk_add_f32 v[16:17], {v(ACC,2)}, {v(ACC+2,2)}\nv_pk_mul_f32 v[18:19], {v(ACC,2)}, {v(ACC,2)}")
    a(f"v_pk_fma_f32 v[18:19], {v(ACC+2,2)}, {v(ACC+2,2)}, v[18:19]")
    for i in range(4, 16, 2): a(f"v_pk_add_f32 v[16:17], v[16:17], {v(ACC+i,2)}\nv_pk_fma_f32 v[18:19], {v(ACC+i,2)}, {v(ACC+i,2)}, v[18:19]")
    a("v_add_f32 v14, v16, v17\nv_add_f32 v15, v18, v19")
    a.emit(zip2(allred_ops(14, 13, "v_add_f32"), allred_ops(15, 16, "v_add_f32")))
    a(f"v_lshlrev_b32 v13, 6, v{vL}\ns_lshl_b32 s36, s40, 10\ns_lshl_b32 s37, s{sCG}, 3\ns_add_u32 s36, s36, s37\ns_add_u32 s36, s36, {WS_ST}")
    a(f"s_mov_b64 exec, 0xffff\nbuffer_store_dwordx2 v[14:15], v13, {s(SRD_WS)}, s36 offen sc1\ns_mov_b64 exec, -1"); vm.issue("hst")
    a.stamp("H stores issued")
    NW2B = 18
    for f in w2[NW2A:NW2B]: f()
    a(vm.wait("hst")); a("s_barrier")
    a.stamp("P2 stores drained")
    signal(a, 64)
    a(f"s_mul_i32 s42, s{sM}, 114688\ns_lshl_b32 s43, s{sW}, 12\ns_add_u32 s43, s43, 98304\ns_add_u32 s42, s42, s43\ns_add_u32 s42, s42, {WS_W1P}")
    for i in range(4): mkw1(i, "w1b", 42, 43)()
    for i in range(4): a(f"v_mov_b32 v{4+i}, 0x3f803f80")
    AV = 136; CS = 168; LCS = 114688
    a(f"s_lshl_b32 s36, s{sW}, 11\nv_add_u32 v11, s36, v{vL16}\nv_add_u32 v12, 65536, v11")
    def csread(st): return [f"ds_read_b128 {v(AV+(st%4)*8+4*k)}, {'v11' if st < 8 else 'v12'} offset:{(st % 8)*8192 + k*1024}" for k in range(2)]
    def csmf(st): return [f"{MF} {v(CS+4*k)}, {v(AV+(st%4)*8+4*k)}, v[4:7], {'0' if st == 0 else v(CS+4*k)}" for k in range(2)]
    for st in range(3): a.emit(csread(st))
    for st in range(12):
        if st + 3 < 12: a.emit(csread(st+3))
        a(f"s_waitcnt lgkmcnt({2*min(3, 11-st)})")
        a.emit(csmf(st))
    a(vm.wait("w1b")); a("s_barrier")
    a.emit(csread(12) + csread(13)); a("s_waitcnt lgkmcnt(0)"); a.emit(csmf(12) + csmf(13))
    a(f"v_lshrrev_b32 v14, 4, v{vL}\nv_lshlrev_b32 v14, 4, v14\ns_lshl_b32 s36, s{sW}, 7\ns_add_u32 s36, s36, {LCS}\nv_add_u32 v12, s36, v14")
    a(f"ds_write_b128 v12, {v(CS)}\nds_write_b128 v12, {v(CS+4)} offset:64")
    a("s_waitcnt lgkmcnt(0)\ns_barrier")
    a(f"v_add_u32 v12, {LCS}, v14")
    for f in range(8): a(f"ds_read_b128 {v(AV+4*f)}, v12 offset:{f*64}")
    a(f"s_lshl_b32 s41, s{sC}, 3\ns_lshl_b32 s37, s{sW}, 1\ns_add_u32 s41, s41, s37\ns_add_u32 s42, s41, 1")
    a("s_waitcnt lgkmcnt(0)")
    a(f"v_and_b32 v13, 15, v{vL}\nv_lshlrev_b32 v13, 6, v13\nv_lshrrev_b32 v14, 4, v{vL}\nv_lshl_add_u32 v12, v14, 4, v13")
    a(f"s_mul_i32 s43, s41, 14336\ns_add_u32 s43, s43, {WS_H}\nv_add_u32 v11, 65536, v{vL16}\nv_add_u32 v15, 14336, v{vL16}")
    poll(a, 64, 14, 1)
    a("s_barrier")
    a.stamp("S2 passed")
    ST = 16
    load_stats(a, ST, 41, "st"); load_stats(a, ST+4, 42, "st"); load_stats(a, 248, 40, "st4")
    HF = 24
    def mkh(st, t):
        def f():
            if t == 0: a(f"s_add_u32 s37, s43, {st*1024}")
            a(f"buffer_load_dwordx4 {v(HF+(t*14+st)*4)}, {'v'+str(vL16) if t == 0 else 'v15'}, {s(SRD_WS)}, s37 offen sc1"); vm.issue(f"h{st}")
        return f
    hl = [mkh(st, t) for st in range(14) for t in range(2)]
    NUP = 10
    for f in hl[:NUP]: f()
    a(vm.wait("st"))
    a.emit(zip2(reduce_stats_ops(ST, 13, False), reduce_stats_ops(ST+4, 14, False)))
    ACC = 168
    for t in range(2):
        for f in range(8):
            for h in (0, 2):
                a(f"v_pk_mul_f32 {v(ACC+(t*8+f)*4+h,2)}, {v(AV+4*f+h,2)}, {v(ST+4*t,2)} op_sel_hi:[1,0] neg_lo:[0,1] neg_hi:[0,1]")
    Aset = lambda st, f: v(AV+4*f) if (st & 1) == 0 else ac(224+4*f)
    for f in range(8): a(f"ds_read_b128 {Aset(0, f)}, v{vL16} offset:{f*1024}")
    rest_vm = hl[NUP:] + w2[NW2B:]
    for st in range(14):
        rd = []
        if st < 13:
            rd = [f"ds_read_b128 {Aset(st+1, f)}, {'v'+str(vL16) if st+1 < 8 else 'v11'} offset:{((st+1) % 8)*8192 + f*1024}" for f in range(8)]
        a(f"s_waitcnt vmcnt({vm.younger(f'h{st}')}) lgkmcnt(0)")
        mf = [f"{MF} {v(ACC+(t*8+f)*4)}, {Aset(st, f)}, {v(HF+(t*14+st)*4)}, {v(ACC+(t*8+f)*4)}" for f in range(8) for t in range(2)]
        body = merge(mf, rd, first=0, every=1)
        take = rest_vm[:4]; rest_vm = rest_vm[4:]
        a.emit(merge(body, take, first=2, every=6))
    for f in rest_vm: f()
    a.stamp("P3 loop end")
    a.emit(reduce_stats_ops(248, 13, True))
    a(f"s_mul_i32 s36, s41, 56\ns_lshl_b32 s37, s{sM}, 2\ns_add_u32 s36, s36, s37\ns_lshl_b32 s36, s36, 10\ns_add_u32 s43, s36, {WS_HID}")
    for t in range(2):
        for p in range(4):
            d = 16 + 4*((t*4+p) % 4)
            b = ACC + (t*8+2*p)*4
            for k in range(4): a(f"v_cvt_pk_bf16_f32 v{d+k}, v{b+2*k}, v{b+2*k+1}")
            for k in range(4): a(f"v_pk_max_i16 v{d+k}, v{d+k}, 0")
            a(f"s_add_u32 s36, s43, {t*57344 + p*1024}")
            a(f"buffer_store_dwordx4 {v(d)}, v{vL16}, {s(SRD_WS)}, s36 offen sc1"); vm.issue("hid")
    a(vm.wait("hid")); a("s_barrier")
    a.stamp("P3 stores drained")
    signal(a, 128)
    a(f"s_lshl_b32 s42, s{sC}, 3\ns_lshl_b32 s37, s{sRH}, 2\ns_add_u32 s42, s42, s37")
    for u in range(4):
        a(f"s_add_u32 s36, s{sW}, {u}\ns_and_b32 s36, s36, 3\ns_mul_i32 s36, s36, 57344\nv_add_u32 v{4+u}, s36, v{vL16}")
    a(f"s_mul_i32 s38, s42, 57344\ns_add_u32 s43, s38, {WS_HID}")
    poll(a, 128, 14, 2)
    a("s_barrier")
    a.stamp("S3 passed")
    ACT = 32; NB = 7; ACC = 160
    def mka(i, u):
        def f():
            if u == 0: a(f"s_lshl_b32 s37, s{50+i}, 10\ns_add_u32 s37, s37, s43")
            a(f"buffer_load_dwordx4 {v(ACT+((i % NB)*4+u)*4)}, v{4+u}, {s(SRD_WS)}, s37 offen sc1"); vm.issue(f"a{i}")
        return f
    al = [mka(i, u) for i in range(14) for u in range(4)]
    NUP = 12
    for f in al[:NUP]: f()
    rest_vm = al[NUP:]
    for i in range(14):
        a(f"s_waitcnt vmcnt({vm.younger(f'a{i}')})")
        mf = [f"{MF} {v(ACC+(u*4+f)*4)}, {ac((i*4+f)*4)}, {v(ACT+((i % NB)*4+u)*4)}, {'0' if i == 0 else v(ACC+(u*4+f)*4)}" for u in range(4) for f in range(4)]
        take = rest_vm[:4]; rest_vm = rest_vm[4:]
        a.emit(merge(mf, take, first=1, every=4))
    a.stamp("P4 loop end")
    RA = {1: 12, 2: 14, 3: 15}
    for u in range(1, 4):
        a(f"s_add_u32 s36, s{sW}, {u}\ns_and_b32 s36, s36, 3\ns_mul_i32 s36, s36, 12288\ns_add_u32 s36, s36, {(u-1)*4096}\nv_add_u32 v{RA[u]}, s36, v{vL16}")
    for u in range(1, 4):
        for f in range(4): a(f"ds_write_b128 v{RA[u]}, {v(ACC+(u*4+f)*4)} offset:{f*1024}")
    a(f"s_mul_i32 s36, s{sW}, 12288\nv_add_u32 v11, s36, v{vL16}")
    HV = 96
    for p in range(2):
        for k in range(4):
            a(f"v_lshlrev_b32 v{HV+8*p+2*k}, 16, v{HR+4*p+k}\nv_and_b32 v{HV+8*p+2*k+1}, 0xffff0000, v{HR+4*p+k}")
    a(f"v_and_b32 v13, 15, v{vL}\ns_lshl_b32 s37, s40, 4\nv_add_u32 v13, s37, v13\ns_movk_i32 s38, 896")
    a(f"v_bfe_u32 v14, v{vL}, 4, 1\nv_lshlrev_b32 v14, 5, v14\nv_mad_u32_u24 v13, v13, s38, v14\nv_lshrrev_b32 v14, 5, v{vL}\nv_lshl_add_u32 v13, v14, 4, v13\ns_lshl_b32 s37, s{sCG}, 7\nv_add_u32 v13, s37, v13")
    a("s_waitcnt lgkmcnt(0)\ns_barrier")
    R = 32
    for k in range(12): a(f"ds_read_b128 {v(R+4*k)}, v11 offset:{k*1024}")
    for sl in range(3):
        a(f"s_waitcnt lgkmcnt({8-4*sl})")
        for i in range(0, 16, 2): a(f"v_pk_add_f32 {v(ACC+i,2)}, {v(ACC+i,2)}, {v(R+16*sl+i,2)}")
    for i in range(0, 16, 2): a(f"v_pk_fma_f32 {v(ACC+i,2)}, {v(ACC+i,2)}, v[248:249], {v(HV+i,2)} op_sel:[0,1,0] op_sel_hi:[1,1,1]")
    D = 112
    for i in range(8): a(f"v_cvt_pk_bf16_f32 v{D+i}, v{ACC+2*i}, v{ACC+2*i+1}")
    for p in range(2):
        a(f"v_permlane16_swap_b32 v{D+4*p}, v{D+4*p+2}\nv_permlane16_swap_b32 v{D+4*p+1}, v{D+4*p+3}")
    for p in range(2): a(f"buffer_store_dwordx4 {v(D+4*p)}, v13, {s(SRD_OUT)}, 0 offen offset:{p*64}")
    if OPT["stamps"]:
        a("s_waitcnt vmcnt(0)"); a.stamp("end"); a.cstamp()
    a.label("K_tail")
    if OPT["stamps"]:
        n = a.nst
        a.c(f"stamp 0 CLK 0 {n-2} 1 {n-1}")
        a(f"s_lshl_b32 s36, s2, 2\ns_add_u32 s36, s36, s{sW}\ns_lshl_b32 s36, s36, 7\ns_add_u32 s36, s36, {WS_STAMP}")
        for i in range(n): a(f"v_mov_b32 v13, s{76+i}\nv_mov_b32 v14, {4*i}\nbuffer_store_dword v13, v14, {s(SRD_WS)}, s36 offen")
    a.label("K_done"); a("s_endpgm")
    return a
def build():
    a = build_kernel()
    lines, npad = hazard.pad(a.l)
    print("instr lines", len(lines), "nop states", npad, "stamps", a.nst, file=sys.stderr)
    return wrap([(None, (256,1,1), (256,1,1), 163840)], [(None, "\n".join(lines) + "\n", 512, 102, 256)])
if __name__ == "__main__":
    ap = argparse.ArgumentParser(); ap.add_argument("out"); ap.add_argument("--stamps", action="store_true")
    o = ap.parse_args(); OPT["stamps"] = o.stamps
    open(o.out, "w").write(build())
```

```python
import struct, sys, math, argparse
from asmlib import *
import hazard
def f2h(x): return "0x%08x" % struct.unpack("<I", struct.pack("<f", x))[0]
WS_WOP, WS_W1P, WS_W2P = 0x000000, 0x080000, 0x210000
WS_O, WS_H, WS_ST, WS_FL, WS_HID, WS_SIZE = 0x400000, 0x600000, 0x7C0000, 0x7F0000, 0x800000, 0x1000000
WS_STAMP = 0xF80000
sW, sC, sM, sRH, sCG, sH = 3, 32, 33, 34, 35, 39
SRD_X, SRD_QKV, SRD_WS, SRD_OUT, SRD_W1, SRD_DBG, SRD_WO, SRD_W2 = 8, 12, 16, 20, 24, 28, 4, 76
def v(b, n=4): return f"v[{b}:{b+n-1}]" if n > 1 else f"v{b}"
def ac(b, n=4): return f"a[{b}:{b+n-1}]" if n > 1 else f"a{b}"
def s(b, n=4): return f"s[{b}:{b+n-1}]" if n > 1 else f"s{b}"
MF = "v_mfma_f32_16x16x32_bf16"
SPIN_MAX = 300000
OPT = dict(stamps=False, nop0=False, nomf=False, allst=False)

class VM:
    def __init__(self): self.ops = []
    def issue(self, tag, n=1): self.ops += [tag] * n
    def younger(self, tag):
        last = max(i for i, t in enumerate(self.ops) if t == tag)
        return len(self.ops) - 1 - last
    def wait(self, tag, extra=0):
        n = self.younger(tag) + extra
        assert n <= 63, (tag, n)
        return f"s_waitcnt vmcnt({n})"
class G(Asm):
    def __init__(self):
        super().__init__(); self.vm = VM(); self.nst = 0
    def emit(self, items):
        for x in items:
            if callable(x): x()
            else: self(x)
    def stamp(self, name):
        if not OPT["stamps"]: return
        i = self.nst; self.nst += 1
        self(f"s_memrealtime s[98:99]\ns_waitcnt lgkmcnt(0)\nv_writelane_b32 v255, s98, {i}"); self.c(f"stamp {i} {name}")
    def cstamp(self):
        if not OPT["stamps"]: return
        i = self.nst; self.nst += 1
        self(f"s_memtime s[98:99]\ns_waitcnt lgkmcnt(0)\nv_writelane_b32 v255, s98, {i}")
def merge(main, bg, first=0, every=1):
    out = []; bi = 0
    for i, x in enumerate(main):
        out.append(x)
        if i >= first and (i - first) % every == 0 and bi < len(bg): out.append(bg[bi]); bi += 1
    out += bg[bi:]
    return out
def srd(a, d, base, nbytes):
    a(f"s_mov_b32 s{d}, s{base}\ns_and_b32 s{d+1}, s{base+1}, 0xffff\ns_mov_b32 s{d+2}, {nbytes}\ns_mov_b32 s{d+3}, 0x20000")
def allred_ops(reg, tmp, op):
    return [f"v_mov_b32 v{tmp}, v{reg}", f"v_permlane32_swap_b32 v{tmp}, v{reg}", f"{op} v{reg}, v{reg}, v{tmp}",
            f"v_mov_b32 v{tmp}, v{reg}", f"v_permlane16_swap_b32 v{tmp}, v{reg}", f"{op} v{reg}, v{reg}, v{tmp}"]
def zip2(x, y):
    out = []
    for i in range(max(len(x), len(y))):
        if i < len(x): out.append(x[i])
        if i < len(y): out.append(y[i])
    return out

vL, vX0, vX, vXH, vW, vXR0, vXR1, vWR0, vWR1, vL16, vBG, vBV = 1, 2, 3, 4, 5, 6, 7, 8, 9, 10, 11, 12
SLOT = 30720
XF = [20, 32]; WF = [44, 68]
accQ, accK, accV, csQ, csK, csV, RS, GR, ONES = 92, 108, 132, 156, 164, 172, 180, 192, 16
BP, BC, BP0 = 236, 240, 244
vWOo, vW1o = 252, 253
T4 = 224
T8 = 232
LWO = 106496; LSTG = 114688
FL_S1, FL_S2, FL_S3A, FL_S3B = 0, 64, 128, 192

def prologue(a):
    a("s_cmp_ge_u32 s2, 256\ns_cbranch_scc1 K_done")
    a("s_load_dwordx4 s[44:47], s[0:1], 0\ns_load_dwordx2 s[60:61], s[0:1], 64\ns_load_dwordx4 s[56:59], s[0:1], 48")
    a("s_load_dwordx2 s[48:49], s[0:1], 16\ns_load_dwordx4 s[52:55], s[0:1], 32")
    a(f"v_lshrrev_b32 v2, 6, v0\nv_and_b32 v{vL}, 63, v0")
    if OPT["stamps"]: a("v_mov_b32 v255, 0")
    a(f"v_readfirstlane_b32 s{sW}, v2")
    a(f"s_and_b32 s36, s2, 7\ns_lshr_b32 s37, s2, 3\ns_and_b32 s{sRH}, s36, 1\ns_lshr_b32 s36, s36, 1")
    a(f"s_lshl_b32 s36, s36, 2\ns_lshr_b32 s38, s37, 3\ns_add_u32 s{sC}, s36, s38\ns_and_b32 s{sCG}, s37, 7")
    a(f"s_lshl_b32 s36, s{sRH}, 3\ns_add_u32 s{sH}, s36, s{sCG}")
    a(f"s_mul_i32 s36, s{sRH}, 7\ns_add_u32 s{sM}, s36, s{sCG}")
    a(f"s_lshl_b32 s36, s{sC}, 7\ns_sub_u32 s36, s36, 16\ns_lshl_b32 s37, s{sW}, 3\ns_add_u32 s36, s36, s37")
    a(f"v_lshrrev_b32 v13, 3, v{vL}\nv_add_u32 v13, s36, v13")
    a(f"s_and_b32 s37, s{sW}, 1\ns_lshl_b32 s37, s37, 2\nv_lshrrev_b32 v14, 4, v{vL}\nv_add_u32 v14, s37, v14\nv_and_b32 v15, 7, v{vL}\nv_xor_b32 v14, v14, v15\nv_lshlrev_b32 v14, 4, v14")
    a(f"s_movk_i32 s38, 896\nv_max_i32 v15, 0, v13\nv_mad_u32_u24 v{vX0}, v15, s38, v14")
    a(f"v_add_u32 v13, 32, v13\nv_mad_u32_u24 v{vX}, v13, s38, v14")
    a(f"s_lshl_b32 s36, s{sC}, 7\ns_add_u32 s36, s36, 112\ns_lshl_b32 s37, s{sW}, 2\ns_add_u32 s36, s36, s37")
    a(f"v_lshrrev_b32 v13, 3, v{vL}\nv_add_u32 v13, s36, v13")
    a(f"s_lshl_b32 s37, s{sW}, 1\nv_lshrrev_b32 v14, 4, v{vL}\nv_add_u32 v14, s37, v14\nv_and_b32 v14, 7, v14\nv_and_b32 v15, 7, v{vL}\nv_xor_b32 v14, v14, v15\nv_lshlrev_b32 v14, 4, v14\nv_mad_u32_u24 v{vXH}, v13, s38, v14")
    a(f"s_lshl_b32 s36, s{sW}, 4\nv_lshrrev_b32 v13, 2, v{vL}\nv_add_u32 v13, s36, v13\ns_movk_i32 s38, 2688")
    a(f"v_lshrrev_b32 v14, 5, v{vL}\nv_lshlrev_b32 v14, 1, v14\nv_and_b32 v15, 3, v{vL}\nv_xor_b32 v14, v14, v15\nv_lshlrev_b32 v14, 4, v14\nv_min_u32 v14, 40, v14")
    a(f"s_mul_i32 s36, s{sH}, 56\nv_mad_u32_u24 v13, v13, s38, v14\nv_add_u32 v{vW}, s36, v13")
    a(f"s_lshl_b32 s62, s{sW}, 10\ns_lshl_b32 s63, s{sW}, 9")
    a("s_waitcnt lgkmcnt(0)")
    srd(a, SRD_X, 44, 2048*896); srd(a, SRD_QKV, 46, 448*2688)
def setup_rest():
    o = []
    def e(t): o.extend(x for x in t.split("\n") if x)
    def esrd(d, base, n): e(f"s_mov_b32 s{d}, s{base}\ns_and_b32 s{d+1}, s{base+1}, 0xffff\ns_mov_b32 s{d+2}, {n}\ns_mov_b32 s{d+3}, 0x20000")
    esrd(SRD_OUT, 56, 2048*896); esrd(SRD_DBG, 58, 256); esrd(SRD_W2, 54, 1792*896); esrd(SRD_W1, 52, 448*3584); esrd(SRD_WO, 48, 448*896)
    e(f"v_lshlrev_b32 v{vL16}, 4, v{vL}")
    e(f"v_and_b32 v13, 15, v{vL}\ns_lshl_b32 s36, s{sW}, 5\nv_add_u32 v14, s36, v13\nv_lshlrev_b32 v14, 7, v14")
    e(f"v_lshrrev_b32 v13, 1, v13\nv_lshrrev_b32 v15, 4, v{vL}\nv_xor_b32 v13, v13, v15\nv_lshl_add_u32 v{vXR0}, v13, 4, v14\nv_xor_b32 v13, 4, v13\nv_lshl_add_u32 v{vXR1}, v13, 4, v14")
    e(f"v_lshrrev_b32 v13, 4, v{vL}\nv_lshlrev_b32 v14, 3, v13\nv_bfe_u32 v15, v{vL}, 2, 2\nv_add_u32 v14, v14, v15\nv_lshlrev_b32 v14, 6, v14\nv_add_u32 v14, 18432, v14")
    e(f"v_and_b32 v13, 1, v13\nv_lshlrev_b32 v13, 1, v13\nv_bfe_u32 v15, v{vL}, 1, 1\nv_add_u32 v13, v13, v15")
    e(f"v_lshl_add_u32 v{vWR0}, v13, 4, v14\nv_xor_b32 v13, 2, v13\nv_lshl_add_u32 v{vWR1}, v13, 4, v14")
    e(f"v_and_b32 v13, 1, v{vL}\nv_lshl_add_u32 v{vWR0}, v13, 3, v{vWR0}\nv_xor_b32 v13, v13, v15\nv_lshl_add_u32 v{vWR1}, v13, 3, v{vWR1}")
    for i in range(4): e(f"v_mov_b32 v{ONES+i}, 0x3f803f80")
    e(f"v_and_b32 v13, 15, v{vL}\nv_lshrrev_b32 v15, 2, v13\nv_lshl_add_u32 v{vBG}, v15, 4, v13\nv_lshlrev_b32 v{vBG}, 2, v{vBG}")
    e(f"v_lshrrev_b32 v14, 4, v{vL}\nv_lshlrev_b32 v{vBV}, 4, v14\nv_cmp_eq_u32 s[64:65], 3, v14")
    e(f"v_and_b32 v15, 3, v{vL}\nv_cmp_eq_u32 s[66:67], 1, v15\nv_cmp_eq_u32 s[68:69], 2, v15\nv_cmp_eq_u32 s[70:71], 3, v15")
    e("v_lshlrev_b32 v14, 2, v14\nv_sub_u32 v13, v13, v14")
    e(f"v_mov_b32 v15, {f2h(-1e30)}\nv_mov_b32 v248, 0")
    for k in range(4):
        e(f"v_subrev_u32 v14, {k}, v13\nv_and_b32 v249, 0x80000001, v14\nv_cmp_eq_u32 vcc, 0, v249\nv_cndmask_b32 v{BC+k}, v15, v248, vcc")
        e(f"v_add_u32 v14, 1, v14\nv_and_b32 v249, 0x80000001, v14\nv_cmp_eq_u32 vcc, 0x80000001, v249\nv_cndmask_b32 v{BP+k}, v15, v248, vcc")
    e(f"s_or_b32 s36, s{sC}, s{sW}\ns_cmp_eq_u32 s36, 0\ns_cselect_b64 s[72:73], -1, 0")
    for k in range(4): e(f"v_cndmask_b32 v{BP0+k}, v{BP+k}, v15, s[72:73]")
    e(f"v_bfe_u32 v13, v{vL}, 1, 2\nv_bfe_u32 v14, v{vL}, 4, 2\nv_xor_b32 v13, v13, v14\nv_lshlrev_b32 v13, 5, v13\nv_and_b32 v14, 1, v{vL}\nv_lshl_add_u32 v13, v14, 4, v13")
    e(f"v_lshrrev_b32 v14, 3, v{vL}\ns_movk_i32 s36, 896\nv_mad_u32_u24 v{vWOo}, v14, s36, v13")
    e(f"s_and_b32 s36, s{sW}, 1\ns_lshl_b32 s36, s36, 2\nv_lshrrev_b32 v14, 4, v{vL}\nv_add_u32 v15, s36, v14\nv_bfe_u32 v13, v{vL}, 1, 3\nv_xor_b32 v13, v13, v15\nv_lshlrev_b32 v13, 5, v13")
    e(f"v_and_b32 v15, 1, v{vL}\nv_lshl_add_u32 v13, v15, 4, v13\ns_movk_i32 s36, 3584\nv_mad_u32_u24 v{vW1o}, v14, s36, v13")
    e(f"v_lshrrev_b32 v13, 2, v{vL}\nv_lshrrev_b32 v14, 1, v13\nv_and_b32 v14, 3, v14\nv_and_b32 v15, 3, v{vL}\nv_lshlrev_b32 v15, 3, v15")
    e(f"v_lshl_add_u32 v248, v13, 7, v15\nv_lshl_add_u32 v{T4}, v14, 5, v248")
    for f in range(1, 4): e(f"v_xor_b32 v{T4+f}, {f << 5}, v{T4}")
    return o
def chunk_groups(a, q):
    slot = (q % 5) * SLOT
    def mk(txt):
        def f():
            a(txt); a.vm.issue(f"c{q}")
        return f
    g = []
    for jj in range(4):
        g.append(mk(f"s_add_u32 m0, s62, {slot + jj*4096}\ns_mov_b32 s46, {q*128 + (jj-1)*32*896 if jj else q*128}\nbuffer_load_dwordx4 v{vX if jj else vX0}, {s(SRD_X)}, s46 offen lds"))
    g.append(mk(f"s_add_u32 m0, s63, {slot + 16384}\ns_mov_b32 s46, {q*128}\ns_mov_b32 exec_hi, 0\nbuffer_load_dwordx4 v{vXH}, {s(SRD_X)}, s46 offen lds\ns_mov_b32 exec_hi, -1"))
    for mat in range(3):
        g.append(mk(f"s_add_u32 m0, s62, {slot + 18432 + mat*4096}\ns_mov_b32 s46, {q*64*2688 + mat*896}\nbuffer_load_dwordx4 v{vW}, {s(SRD_QKV)}, s46 offen lds"))
    return [g[5], g[0], g[6], g[1], g[7], g[2], g[3], g[4]]
def p1_reads(ks):
    st = ks; o = []
    xb = f"v{vXR0}" if ks == 0 else f"v{vXR1}"
    for tt in range(3): o.append(f"ds_read_b128 {v(XF[st] + 4*tt)}, {xb} offset:{tt*2048}")
    for mat in range(3):
        for t in range(2):
            for hf in range(2):
                o.append(f"ds_read_b64_tr_b16 {v(WF[st] + (mat*2+t)*4 + 2*hf, 2)}, v{vWR0 if t == 0 else vWR1} offset:{mat*4096 + ks*2048 + hf*256}")
    return o
def p1_mfma(ks, first):
    st = ks
    X = lambda tt: v(XF[st] + 4*tt); Wm = lambda m, t: v(WF[st] + (m*2+t)*4); O = v(ONES)
    o = []
    def mf(d, A, B): o.append(f"{MF} {v(d)}, {A}, {B}, {'0' if first else v(d)}" if not OPT["nomf"] else "s_nop 0")
    for tt in range(3): mf(RS + 4*tt, O, X(tt))
    for tt in range(3): mf(GR + 4*tt, X(tt), X(tt))
    for t in range(2):
        for q in range(2): mf(accQ + (q*2+t)*4, Wm(0, t), X(1+q))
        mf(csQ + 4*t, Wm(0, t), O)
    for t in range(2):
        for tt in range(3): mf(accK + (tt*2+t)*4, Wm(1, t), X(tt))
        mf(csK + 4*t, Wm(1, t), O)
    for t in range(2):
        for tt in range(3): mf(accV + (tt*2+t)*4, X(tt), Wm(2, t))
        mf(csV + 4*t, O, Wm(2, t))
    return o
def addr_step(q):
    d = (((q+1) % 5) - (q % 5)) * SLOT
    return [f"v_add_u32 v{rg}, {d & 0xffffffff}, v{rg}" for rg in (vXR0, vXR1, vWR0, vWR1)]
def spin(a, reload, cmpins, name):
    Ll, Lok = a.newlabel(name + "l"), a.newlabel(name + "k")
    a("s_mov_b32 s38, 0")
    a.label(Ll)
    a(f"{cmpins}\ns_cbranch_vccz {Lok}")
    a(f"s_sleep 1\n{reload}\ns_waitcnt vmcnt(0)")
    a(f"s_add_u32 s38, s38, 1\ns_cmp_lt_u32 s38, {SPIN_MAX}\ns_cbranch_scc1 {Ll}")
    a.label(Lok)
def only_wave(a, w, body):
    L = a.newlabel("OW")
    a(f"s_cmp_lg_u32 s{sW}, {w}\ns_cbranch_scc1 {L}")
    body()
    a.label(L)
def signal(a, off, sidx):
    def b():
        a(f"s_lshl_b32 s36, s{sC}, 9\ns_lshl_b32 s37, s{sidx}, 2\ns_add_u32 s36, s36, s37\ns_add_u32 s36, s36, {WS_FL + off}")
        a(f"v_mov_b32 v13, 0\nv_mov_b32 v14, 1\ns_mov_b64 exec, 1\nbuffer_store_dword v14, v13, {s(SRD_WS)}, s36 offen sc1\ns_mov_b64 exec, -1")
    only_wave(a, 0, b)
def poll(a, off, n, wave):
    def b():
        a(f"v_min_u32 v13, {n-1}, v{vL}\nv_lshlrev_b32 v13, 2, v13\ns_lshl_b32 s37, s{sC}, 9\ns_add_u32 s37, s37, {WS_FL + off}")
        ld = f"buffer_load_dword v14, v13, {s(SRD_WS)}, s37 offen sc1"
        a(ld + "\ns_waitcnt vmcnt(0)")
        Ll, Lok = a.newlabel("PLl"), a.newlabel("PLk")
        a("s_mov_b32 s38, 0")
        a.label(Ll)
        a(f"v_cmp_ne_u32 vcc, 1, v14\ns_cbranch_vccz {Lok}")
        a(f"{ld}\ns_waitcnt vmcnt(0)")
        a(f"s_add_u32 s38, s38, 1\ns_cmp_lt_u32 s38, {SPIN_MAX}\ns_cbranch_scc1 {Ll}")
        a.label(Lok)
    only_wave(a, wave, b)
def dma(a, tag, m0expr, soffexpr, vo, srd_):
    def f():
        a(f"s_add_u32 m0, {m0expr}\ns_add_u32 s46, {soffexpr}\nbuffer_load_dwordx4 v{vo}, {s(srd_)}, s46 offen lds"); a.vm.issue(tag)
    return f

def p1(a):
    vm = a.vm
    prologue(a)
    a.stamp("start"); a.cstamp()
    g = chunk_groups(a, 0)
    for f in g[:2]: f()
    srd(a, SRD_WS, 60, WS_SIZE)
    L = a.newlabel("LZ")
    a(f"s_or_b32 s36, s{sH}, s{sW}\ns_cmp_lg_u32 s36, 0\ns_cbranch_scc1 {L}")
    a(f"v_lshlrev_b32 v13, 4, v{vL}\nv_mov_b32 v16, 0\nv_mov_b32 v17, 0\nv_mov_b32 v18, 0\nv_mov_b32 v19, 0\ns_lshl_b32 s36, s{sC}, 9\ns_add_u32 s36, s36, {WS_FL}")
    a(f"s_mov_b64 exec, 0xffff\nbuffer_store_dwordx4 v[16:19], v13, {s(SRD_WS)}, s36 offen sc1\ns_mov_b64 exec, -1")
    a.label(L)
    rest = setup_rest()
    g = g[2:] + chunk_groups(a, 1)
    per = (len(rest) + len(g) - 1) // len(g)
    for i, f in enumerate(g):
        f()
        for x in rest[i*per:(i+1)*per]: a(x)
    L = a.newlabel("LH")
    a(f"s_or_b32 s36, s{sH}, s{sW}\ns_cmp_lg_u32 s36, 0\ns_cbranch_scc1 {L}")
    a(f"s_waitcnt vmcnt({len(g)})\ns_lshl_b32 s36, s{sC}, 2\nv_mov_b32 v13, s36\nv_mov_b32 v14, 1\ns_mov_b64 exec, 1\nbuffer_store_dword v14, v13, {s(SRD_DBG)}, 0 offen sc1\ns_mov_b64 exec, -1")
    a.label(L)
    D = OPT.get("dist", 3)
    for q in range(2, D):
        for f in chunk_groups(a, q): f()
    a.stamp("upfront issued")
    a(vm.wait("c0")); a("s_barrier")
    a.stamp("c0 landed")
    for x in p1_reads(0): a(x)
    for q in range(7):
        bg = chunk_groups(a, q + D) if q + D <= 6 else []
        if q == 6:
            a(f"s_lshl_b32 s40, s{sCG}, 7\ns_mul_i32 s41, s{sW}, {8*896}\ns_add_u32 s40, s40, s41\ns_add_u32 s41, s62, {LWO}")
            bg = [dma(a, "wo", f"s41, {n*4096}", f"s40, {n*4*8*896}", vWOo, SRD_WO) for n in range(14)]
        a("s_waitcnt lgkmcnt(0)")
        m0 = merge(p1_mfma(0, q == 0), p1_reads(1), first=0, every=1)
        nb0 = min(len(bg), 4 if q < 6 else 7)
        a.emit(merge(m0, bg[:nb0], first=4, every=(10 if q < 6 else 6)))
        bg = bg[nb0:]
        a("s_waitcnt lgkmcnt(0)")
        m1 = p1_mfma(1, False)
        if OPT.get("pf", 1) and q in (1, 2):
            a(f"s_lshr_b32 s36, s2, 3\ns_lshl_b32 s36, s36, 2\ns_add_u32 s36, s36, s{sW}")
            if q == 1:
                a(f"s_mul_hi_u32 s37, s36, {(2**32 + 13)//14}\ns_mul_i32 s38, s37, 14\ns_sub_u32 s38, s36, s38\ns_lshl_b32 s38, s38, 7\ns_mul_i32 s40, s{sRH}, 1792\ns_add_u32 s38, s38, s40")
                a(f"s_mul_i32 s37, s37, {64*3584}\ns_add_u32 s37, s37, s38\ns_cmp_lt_u32 s36, 98\ns_cselect_b32 s37, s37, 0x7f000000\ns_movk_i32 s38, 3584")
                a(f"v_mul_u32_u24 v254, s38, v{vL}\nbuffer_load_dword v254, v254, {s(SRD_W1)}, s37 offen"); vm.issue("pf")
            else:
                a(f"s_mul_hi_u32 s37, s36, 0x24924925\ns_mul_i32 s38, s37, 7\ns_sub_u32 s38, s36, s38\ns_lshl_b32 s38, s38, 7")
                a(f"s_mul_i32 s37, s37, {64*896}\ns_add_u32 s37, s37, s38\ns_cmp_lt_u32 s36, 49\ns_cselect_b32 s37, s37, 0x7f000000\ns_movk_i32 s38, 896")
                a(f"v_mul_u32_u24 v254, s38, v{vL}\nbuffer_load_dword v254, v254, {s(SRD_WO)}, s37 offen"); vm.issue("pf")
        if q == 5:
            a(f"s_cmp_eq_u32 s{sCG}, 7\ns_cselect_b32 s{SRD_W1+2}, 0, s{SRD_W1+2}\ns_cselect_b32 s{SRD_WO+2}, 0, s{SRD_WO+2}")
        if q == 3:
            def hp(): a(f"v_and_b32 v14, 15, v{vL}\nv_lshlrev_b32 v14, 2, v14\nbuffer_load_dword v15, v14, {s(SRD_DBG)}, 0 offen sc1")
            only_wave(a, 0, hp)
            hs_mark = len(vm.ops)
        if q < 6:
            head = m1[:8]; tail = m1[8:]
            nb1 = min(len(bg), 1)
            a.emit(merge(head, bg[:nb1], first=4, every=4)); bg = bg[nb1:]
            a(vm.wait(f"c{q+1}"))
            if q == 5:
                def hc2():
                    a(f"s_waitcnt vmcnt({len(vm.ops) - hs_mark})\nv_and_b32 v14, 15, v{vL}\nv_lshlrev_b32 v14, 2, v14")
                    spin(a, f"buffer_load_dword v15, v14, {s(SRD_DBG)}, 0 offen sc1", "v_cmp_ne_u32 vcc, 1, v15", "HS")
                only_wave(a, 0, hc2)
            a("s_barrier")
            if q in (2, 5) or (OPT["allst"] and q < 6): a.stamp(f"c{q+1} landed")
            for x in addr_step(q): a(x)
            t2 = merge(tail, p1_reads(0), first=0, every=1)
            a.emit(merge(t2, bg, first=3, every=8))
        else:
            a.emit(merge(m1, bg, first=1, every=4))
    a("s_barrier")
    a.stamp("P1 loop end")

def p1_epilogue(a, bgl):
    o = []
    def e(t): o.extend(x for x in t.split("\n") if x)
    MEAN = [204, 206, 208]; RSTD = [210, 212, 214]; SQ = [205, 207, 209]
    MV, RV = 20, 32
    for tt in range(3):
        g = GR + 4*tt
        e(f"v_cndmask_b32 v{SQ[tt]}, v{g}, v{g+1}, s[66:67]\nv_cndmask_b32 v{SQ[tt]}, v{SQ[tt]}, v{g+2}, s[68:69]\nv_cndmask_b32 v{SQ[tt]}, v{SQ[tt]}, v{g+3}, s[70:71]")
        e(f"ds_bpermute_b32 v{SQ[tt]}, v{vBG}, v{SQ[tt]}")
        e(f"v_mul_f32 v{MEAN[tt]}, {f2h(1/448)}, v{RS+4*tt}")
    for tt in range(3):
        for k in range(4): e(f"ds_bpermute_b32 v{MV+4*tt+k}, v{vBV}, v{MEAN[tt]} offset:{4*k}")
    def pkfma_negb(d, bc, cs): return f"v_pk_fma_f32 {v(d,2)}, {v(bc,2)}, {v(cs,2)}, {v(d,2)} op_sel_hi:[0,1,1] neg_lo:[1,0,0] neg_hi:[1,0,0]"
    def pkmul_b(d, bc): return f"v_pk_mul_f32 {v(d,2)}, {v(bc,2)}, {v(d,2)} op_sel_hi:[0,1]"
    for tt in range(3):
        for t in range(2):
            b = accK + (tt*2+t)*4
            e(pkfma_negb(b, MEAN[tt], csK+4*t)); e(pkfma_negb(b+2, MEAN[tt], csK+4*t+2))
    e("s_waitcnt lgkmcnt(12)")
    e(f"s_mov_b32 s36, {f2h(1/448)}")
    for tt in range(3): e(f"v_mul_f32 v{216+tt}, v{MEAN[tt]}, v{MEAN[tt]}")
    for tt in range(3): e(f"v_fma_f32 v{216+tt}, v{SQ[tt]}, s36, -v{216+tt}")
    for tt in range(3): e(f"v_max_f32 v{216+tt}, 0, v{216+tt}")
    for tt in range(3): e(f"v_add_f32 v{216+tt}, {f2h(1e-5)}, v{216+tt}")
    for tt in range(3): e(f"v_rsq_f32 v{RSTD[tt]}, v{216+tt}")
    for q in range(2):
        for t in range(2):
            b = accQ + (q*2+t)*4
            e(pkfma_negb(b, MEAN[1+q], csQ+4*t)); e(pkfma_negb(b+2, MEAN[1+q], csQ+4*t+2))
    for tt in range(3):
        for k in range(4): e(f"ds_bpermute_b32 v{RV+4*tt+k}, v{vBV}, v{RSTD[tt]} offset:{4*k}")
    KF, QF, VP = 44, 56, 64
    sc = 28 ** -0.5 * math.log2(math.e)
    RQ = [216, 218, 220, 222]
    for q in range(2):
        e(f"v_mul_f32 v{RQ[2*q]}, {f2h(sc)}, v{RSTD[1+q]}")
        e(f"v_cndmask_b32 v{RQ[2*q+1]}, v{RQ[2*q]}, 0, s[64:65]")
    for tt in range(3):
        for t in range(2):
            b = accK + (tt*2+t)*4
            e(pkmul_b(b, RSTD[tt])); e(pkmul_b(b+2, RSTD[tt]))
            e(f"v_cvt_pk_bf16_f32 v{KF+4*tt+2*t}, v{b}, v{b+1}\nv_cvt_pk_bf16_f32 v{KF+4*tt+2*t+1}, v{b+2}, v{b+3}")
    for q in range(2):
        for t in range(2):
            b = accQ + (q*2+t)*4
            e(pkmul_b(b, RQ[2*q+t])); e(pkmul_b(b+2, RQ[2*q+t]))
            e(f"v_cvt_pk_bf16_f32 v{QF+4*q+2*t}, v{b}, v{b+1}\nv_cvt_pk_bf16_f32 v{QF+4*q+2*t+1}, v{b+2}, v{b+3}")
    S = [92, 100]; PP = [108, 112]; OO = [116, 124]; OUT = [76, 80]
    for q in range(2):
        e(f"{MF} {v(S[q])}, {v(KF+4*q)}, {v(QF+4*q)}, {v(BP0 if q == 0 else BP)}")
        e(f"{MF} {v(S[q]+4)}, {v(KF+4*(q+1))}, {v(QF+4*q)}, {v(BC)}")
    e("s_waitcnt lgkmcnt(0)")
    for tt in range(3):
        for t in range(2):
            b = accV + (tt*2+t)*4
            for h in (0, 2):
                e(f"v_pk_fma_f32 {v(b+h,2)}, {v(MV+4*tt+h,2)}, {v(csV+4*t,2)}, {v(b+h,2)} op_sel_hi:[1,0,1] neg_lo:[1,0,0] neg_hi:[1,0,0]")
                e(f"v_pk_mul_f32 {v(b+h,2)}, {v(b+h,2)}, {v(RV+4*tt+h,2)}")
            e(f"v_cvt_pk_bf16_f32 v{VP+6*t+2*tt}, v{b}, v{b+1}\nv_cvt_pk_bf16_f32 v{VP+6*t+2*tt+1}, v{b+2}, v{b+3}")
    def soft(q):
        r = []; S0 = S[q]; m = 216 + 4*q; t = m + 1
        r += [f"v_max3_f32 v{m}, v{S0}, v{S0+1}, v{S0+2}", f"v_max3_f32 v{m}, v{m}, v{S0+3}, v{S0+4}", f"v_max3_f32 v{m}, v{m}, v{S0+5}, v{S0+6}", f"v_max_f32 v{m}, v{m}, v{S0+7}"]
        r += allred_ops(m, t, "v_max_f32")
        for k in range(0, 8, 2): r.append(f"v_pk_add_f32 {v(S0+k,2)}, {v(S0+k,2)}, {v(m,2)} op_sel_hi:[1,0] neg_lo:[0,1] neg_hi:[0,1]")
        for k in range(8): r.append(f"v_exp_f32 v{S0+k}, v{S0+k}")
        r += [f"v_pk_add_f32 {v(m+2,2)}, {v(S0,2)}, {v(S0+2,2)}", f"v_pk_add_f32 {v(m,2)}, {v(S0+4,2)}, {v(S0+6,2)}",
              f"v_pk_add_f32 {v(m,2)}, {v(m,2)}, {v(m+2,2)}", f"v_add_f32 v{m}, v{m}, v{m+1}"]
        r += allred_ops(m, t, "v_add_f32")
        r.append(f"v_rcp_f32 v{m}, v{m}")
        for k in range(0, 8, 2): r.append(f"v_pk_mul_f32 {v(S0+k,2)}, {v(S0+k,2)}, {v(m,2)} op_sel_hi:[1,0]")
        for k in range(4): r.append(f"v_cvt_pk_bf16_f32 v{PP[q]+k}, v{S0+2*k}, v{S0+2*k+1}")
        for tq in range(2): r.append(f"{MF} {v(OO[q]+4*tq)}, {v(VP+6*tq+2*q)}, {v(PP[q])}, 0")
        return r
    o += zip2(soft(0), soft(1))
    for q in range(2):
        for k in range(4): e(f"v_cvt_pk_bf16_f32 v{OUT[q]+k}, v{OO[q]+2*k}, v{OO[q]+2*k+1}")
        e(f"v_cndmask_b32 v{OUT[q]+2}, v{OUT[q]+2}, 0, s[64:65]\nv_cndmask_b32 v{OUT[q]+3}, v{OUT[q]+3}, 0, s[64:65]")
    every = max(1, len(o) // (len(bgl) + 1))
    a.emit(merge(o, bgl, first=2, every=every))
    a(f"s_lshl_b32 s36, s{sC}, 3\ns_lshl_b32 s37, s{sW}, 1\ns_add_u32 s36, s36, s37\ns_lshl_b32 s36, s36, 4\ns_add_u32 s36, s36, s{sH}\ns_lshl_b32 s36, s36, 10\ns_add_u32 s36, s36, {WS_O}\ns_add_u32 s37, s36, 16384")
    a(f"buffer_store_dwordx4 {v(OUT[0])}, v{vL16}, {s(SRD_WS)}, s36 offen sc1\nbuffer_store_dwordx4 {v(OUT[1])}, v{vL16}, {s(SRD_WS)}, s37 offen sc1")
    a.vm.issue("ost", 2)

def load_stats(a, dst, sT, tag):
    a(f"s_lshl_b32 s36, s{sT}, 10\ns_add_u32 s36, s36, {WS_ST}")
    a(f"buffer_load_dwordx4 {v(dst)}, v12, {s(SRD_WS)}, s36 offen sc1"); a.vm.issue(tag)
def reduce_stats_ops(d, tmp, need_var):
    o = [f"v_cndmask_b32 v{d+2}, v{d+2}, 0, s[64:65]", f"v_add_f32 v{d}, v{d}, v{d+2}"]
    o += allred_ops(d, tmp, "v_add_f32")
    o.append(f"v_mul_f32 v{d}, {f2h(1/448)}, v{d}")
    if need_var:
        o += [f"v_cndmask_b32 v{d+3}, v{d+3}, 0, s[64:65]", f"v_add_f32 v{d+1}, v{d+1}, v{d+3}"]
        o += allred_ops(d+1, tmp, "v_add_f32")
        o += [f"v_mul_f32 v{tmp}, v{d}, v{d}", f"s_mov_b32 s36, {f2h(1/448)}", f"v_fma_f32 v{tmp}, v{d+1}, s36, -v{tmp}", f"v_max_f32 v{tmp}, 0, v{tmp}",
              f"v_add_f32 v{tmp}, {f2h(1e-5)}, v{tmp}", f"v_rsq_f32 v{d+1}, v{tmp}"]
    return o

def build_kernel():
    a = G(); vm = a.vm
    p1(a)
    a(f"s_lshl_b32 s40, s{sM}, 8\ns_mul_i32 s41, s{sW}, {4*3584}\ns_add_u32 s40, s40, s41")
    w1a = [dma(a, "w1a", f"s62, {n*4096}", f"s40, {n*16*3584}", vW1o, SRD_W1) for n in range(26)]
    NE = OPT.get("ne", 18)
    p1_epilogue(a, w1a[:NE])
    a.stamp("o stores issued")
    for f in w1a[NE:]: f()
    a(vm.wait("ost")); a("s_barrier")
    a.stamp("P1 stores drained")
    signal(a, FL_S1, sH)
    a(f"s_cmp_eq_u32 s{sCG}, 7\ns_cbranch_scc1 {'K_pf' if OPT.get('pf', 1) else 'K_tail'}")
    a(f"s_lshl_b32 s40, s{sC}, 3\ns_lshl_b32 s37, s{sRH}, 2\ns_add_u32 s40, s40, s37\ns_add_u32 s40, s40, s{sW}")
    a(f"v_and_b32 v13, 15, v{vL}\ns_lshl_b32 s37, s40, 4\nv_add_u32 v13, s37, v13\ns_movk_i32 s38, 896\nv_lshrrev_b32 v14, 4, v{vL}\nv_lshlrev_b32 v14, 3, v14\nv_mad_u32_u24 v13, v13, s38, v14\ns_lshl_b32 s37, s{sCG}, 7\nv_add_u32 v13, s37, v13")
    XR = 16; ACC = 132
    for f in range(4):
        a(f"buffer_load_dwordx2 {v(XR+2*f, 2)}, v13, {s(SRD_X)}, 0 offen offset:{f*32}"); vm.issue("xr")
    for i in range(14):
        half = i // 7
        a(f"s_mul_i32 s36, s{sW}, 7\ns_add_u32 s36, s36, {i % 7}\ns_lshr_b32 s37, s36, 1\ns_lshl_b32 s37, s37, 2\ns_and_b32 s36, s36, 1\ns_add_u32 s37, s37, s36\ns_add_u32 s{50+i}, s37, {2*half}")
    a(f"v_lshrrev_b32 v13, 2, v{vL}\nv_and_b32 v14, 7, v13\nv_and_b32 v15, 3, v{vL}\nv_lshlrev_b32 v15, 3, v15\nv_lshl_add_u32 v15, v13, 8, v15\nv_lshl_add_u32 v{T8}, v14, 5, v15")
    for f in range(1, 8): a(f"v_xor_b32 v{T8+f}, {f << 5}, v{T8}")
    TW = 96
    for f in range(4): a(f"v_add_u32 v{TW+f}, {LWO}, v{T4+f}")
    a(f"v_mov_b32 v15, 0\nv_cndmask_b32 v15, v15, 1.0, s[64:65]\nv_cvt_u32_f32 v15, v15\nv_lshlrev_b32 v15, 10, v15")
    a(vm.wait("xr"))
    for f in range(4):
        for k in range(2):
            a(f"v_lshlrev_b32 v{ACC+4*f+2*k}, 16, v{XR+2*f+k}\nv_and_b32 v{ACC+4*f+2*k+1}, 0xffff0000, v{XR+2*f+k}")
    A = [100, 116]
    def wor(h, f, hf): return f"ds_read_b64_tr_b16 {v(A[h&1]+4*f+2*hf, 2)}, v{TW + (f ^ (2*(h&1)))} offset:{h*3584 + hf*2048}"
    def wo_reads(h):
        r = [wor(h, f, 0) for f in range(4)]
        if h == 15: r += [f"v_sub_u32 v{TW+k}, v{TW+k}, v15" for k in range(4)]
        return r + [wor(h, f, 1) for f in range(4)]
    a.emit(wo_reads(0))
    a(f"s_lshl_b32 s41, s40, 14\ns_add_u32 s41, s41, {WS_O}")
    poll(a, FL_S1, 16, 0)
    a("s_barrier")
    a.stamp("S1 passed")
    OF = 32
    def mko(h):
        def f():
            a(f"s_add_u32 s37, s41, {h*1024}\nbuffer_load_dwordx4 {v(OF+4*h)}, v{vL16}, {s(SRD_WS)}, s37 offen sc1"); vm.issue(f"o{h}")
        return f
    for h in range(16): mko(h)()
    for h in range(16):
        if h < 15: a.emit(wo_reads(h+1))
        a(f"s_waitcnt vmcnt({vm.younger(f'o{h}')}) lgkmcnt({8 if h < 15 else 0})")
        for f in range(4): a(f"{MF} {v(ACC+4*f)}, {v(A[h&1]+4*f)}, {v(OF+4*h)}, {v(ACC+4*f)}")
    HR = 240
    for i in range(8): a(f"v_cvt_pk_bf16_f32 v{HR+i}, v{ACC+2*i}, v{ACC+2*i+1}")
    a(f"s_mul_i32 s36, s40, 14\ns_lshl_b32 s37, s{sCG}, 1\ns_add_u32 s36, s36, s37\ns_lshl_b32 s36, s36, 10\ns_add_u32 s36, s36, {WS_H}\ns_add_u32 s37, s36, 1024")
    a(f"buffer_store_dwordx4 {v(HR)}, v{vL16}, {s(SRD_WS)}, s36 offen sc1\nbuffer_store_dwordx4 {v(HR+4)}, v{vL16}, {s(SRD_WS)}, s37 offen sc1"); vm.issue("hst", 2)
    a(f"v_pk_add_f32 v[16:17], {v(ACC,2)}, {v(ACC+2,2)}\nv_pk_mul_f32 v[18:19], {v(ACC,2)}, {v(ACC,2)}")
    a(f"v_pk_fma_f32 v[18:19], {v(ACC+2,2)}, {v(ACC+2,2)}, v[18:19]")
    for i in range(4, 16, 2): a(f"v_pk_add_f32 v[16:17], v[16:17], {v(ACC+i,2)}\nv_pk_fma_f32 v[18:19], {v(ACC+i,2)}, {v(ACC+i,2)}, v[18:19]")
    a("v_add_f32 v14, v16, v17\nv_add_f32 v15, v18, v19")
    a.emit(zip2(allred_ops(14, 13, "v_add_f32"), allred_ops(15, 16, "v_add_f32")))
    a(f"v_lshlrev_b32 v13, 6, v{vL}\ns_lshl_b32 s36, s40, 10\ns_lshl_b32 s37, s{sCG}, 3\ns_add_u32 s36, s36, s37\ns_add_u32 s36, s36, {WS_ST}")
    a(f"s_mov_b64 exec, 0xffff\nbuffer_store_dwordx2 v[14:15], v13, {s(SRD_WS)}, s36 offen sc1\ns_mov_b64 exec, -1"); vm.issue("hst")
    a.stamp("H stores issued")
    for i in range(4): a(f"v_mov_b32 v{4+i}, 0x3f803f80")
    AV = 136; CS = 168
    a(f"s_lshl_b32 s36, s{sW}, 6\nv_xor_b32 v20, s36, v{T8}\nv_xor_b32 v21, 32, v20\nv_add_u32 v22, 65536, v20\nv_add_u32 v23, 65536, v21")
    def csread(st): return [f"ds_read_b64_tr_b16 {v(AV+(st%4)*8+4*k+2*hf, 2)}, v{(20 if st < 8 else 22)+k} offset:{(st % 8)*8192 + hf*4096}" for k in range(2) for hf in range(2)]
    def csmf(st): return [f"{MF} {v(CS+4*k)}, {v(AV+(st%4)*8+4*k)}, v[4:7], {'0' if st == 0 else v(CS+4*k)}" for k in range(2)]
    for st in range(2): a.emit(csread(st))
    for st in range(13):
        if st + 2 < 13: a.emit(csread(st+2))
        a(f"s_waitcnt lgkmcnt({4*min(2, 12-st)})")
        a.emit(csmf(st))
    a(vm.wait("hst")); a("s_barrier")
    a.stamp("P2 stores drained")
    signal(a, FL_S2, sM)
    a(f"s_lshl_b32 s42, s{sM}, 8\ns_mul_i32 s43, s{sW}, {4*3584}\ns_add_u32 s42, s42, s43")
    a(f"s_lshl_b32 s80, s{sW}, 10")
    for n in (26, 27): dma(a, "w1b", f"s80, {n*4096}", f"s42, {n*16*3584}", vW1o, SRD_W1)()
    a(vm.wait("w1b")); a("s_barrier")
    a.emit(csread(13)); a("s_waitcnt lgkmcnt(0)"); a.emit(csmf(13))
    LCS = LSTG
    a(f"v_lshrrev_b32 v14, 4, v{vL}\nv_lshlrev_b32 v14, 4, v14\ns_lshl_b32 s36, s{sW}, 7\ns_add_u32 s36, s36, {LCS}\nv_add_u32 v12, s36, v14")
    a(f"ds_write_b128 v12, {v(CS)}\nds_write_b128 v12, {v(CS+4)} offset:64")
    a("s_waitcnt lgkmcnt(0)\ns_barrier")
    a(f"v_add_u32 v12, {LCS}, v14")
    for f in range(8): a(f"ds_read_b128 {v(AV+4*f)}, v12 offset:{f*64}")
    a(f"s_lshl_b32 s41, s{sC}, 3\ns_lshl_b32 s37, s{sW}, 1\ns_add_u32 s41, s41, s37\ns_add_u32 s42, s41, 1")
    a("s_waitcnt lgkmcnt(0)")
    a(f"v_and_b32 v13, 15, v{vL}\nv_lshlrev_b32 v13, 6, v13\nv_lshrrev_b32 v14, 4, v{vL}\nv_lshl_add_u32 v12, v14, 4, v13")
    a(f"s_mul_i32 s43, s41, 14336\ns_add_u32 s43, s43, {WS_H}\nv_add_u32 v15, 14336, v{vL16}")
    a(f"s_mul_i32 s74, s{sW}, 12288\ns_add_u32 s74, s74, {LSTG}")
    for f in range(4): a(f"v_add_u32 v{4+f}, s74, v{T4+f}")
    a(f"s_lshl_b32 s75, s{sCG}, 7")
    poll(a, FL_S2, 14, 1)
    a("s_barrier")
    a.stamp("S2 passed")
    ST = 16
    load_stats(a, ST, 41, "st"); load_stats(a, ST+4, 42, "st"); load_stats(a, 248, 40, "st4")
    HF = 24
    def mkh(st, t):
        def f():
            if t == 0: a(f"s_add_u32 s37, s43, {st*1024}")
            a(f"buffer_load_dwordx4 {v(HF+(t*14+st)*4)}, {'v'+str(vL16) if t == 0 else 'v15'}, {s(SRD_WS)}, s37 offen sc1"); vm.issue(f"h{st}")
        return f
    hl = [mkh(st, t) for st in range(14) for t in range(2)]
    NUP = OPT.get("nup3", 10)
    for f in hl[:NUP]: f()
    a(vm.wait("st"))
    a.emit(zip2(reduce_stats_ops(ST, 13, False), reduce_stats_ops(ST+4, 14, False)))
    ACC = 168
    for t in range(2):
        for f in range(8):
            for h in (0, 2):
                a(f"v_pk_mul_f32 {v(ACC+(t*8+f)*4+h,2)}, {v(AV+4*f+h,2)}, {v(ST+4*t,2)} op_sel_hi:[1,0] neg_lo:[0,1] neg_hi:[0,1]")
    Aset = lambda st, f, hf: v(AV+4*f+2*hf, 2) if (st & 1) == 0 else ac(224+4*f+2*hf, 2)
    Aful = lambda st, f: v(AV+4*f) if (st & 1) == 0 else ac(224+4*f)
    def w1reads(st): return [f"ds_read_b64_tr_b16 {Aset(st, f, hf)}, v{T8+f} offset:{(st % 8)*8192 + hf*4096}" for f in range(8) for hf in range(2)]
    a.emit(w1reads(0))
    def w2dma(i, i4, tag):
        def f():
            if i4 == 0: a(f"s_mul_i32 s72, s{50+i}, {32*896}\ns_add_u32 s72, s72, s75")
            a(f"s_add_u32 m0, s74, {(i % 3)*4096 + i4*1024}\ns_add_u32 s46, s72, {i4*8*896}\nbuffer_load_dwordx4 v{vWOo}, {s(SRD_W2)}, s46 offen lds"); vm.issue(tag)
        return f
    def w2tr(i): return [f"ds_read_b64_tr_b16 {ac(16*i+4*f+2*hf, 2)}, v{4+f} offset:{(i % 3)*4096 + hf*2048}" for f in range(4) for hf in range(2)]
    rest_h = hl[NUP:]
    plan_dma = {}; plan_tr = {}
    first = (len(rest_h) + 3) // 4
    for i in range(7):
        plan_dma[first + i] = i
        plan_tr[first + i + 2] = i
    for st in range(14):
        if st == 7:
            for f in range(8): a(f"v_add_u32 v{T8+f}, 65536, v{T8+f}")
        rd = w1reads(st+1) if st < 13 else []
        wt = f"s_waitcnt vmcnt({vm.younger(f'h{st}')}) lgkmcnt(0)"
        a(wt)
        extra = []
        if st in plan_tr:
            i = plan_tr[st]
            a(vm.wait(f"w2a{i}"))
            extra = w2tr(i)
        mf = [f"{MF} {v(ACC+(t*8+f)*4)}, {Aful(st, f)}, {v(HF+(t*14+st)*4)}, {v(ACC+(t*8+f)*4)}" for f in range(8) for t in range(2)]
        body = merge(mf, rd + extra, first=0, every=1) if len(rd + extra) <= 16 else merge(merge(mf, rd, first=0, every=1), extra, first=3, every=3)
        take = rest_h[:4]; rest_h = rest_h[4:]
        if st in plan_dma: take = take + [w2dma(plan_dma[st], i4, f"w2a{plan_dma[st]}") for i4 in range(4)]
        a.emit(merge(body, take, first=2, every=max(1, len(body) // (len(take) + 1))))
    for st in range(14, 20):
        if st in plan_tr:
            i = plan_tr[st]; a(vm.wait(f"w2a{i}")); a.emit(w2tr(i))
    a("s_waitcnt lgkmcnt(0)\ns_barrier")
    a.stamp("P3 loop end")
    a.emit(reduce_stats_ops(248, 13, True))
    a(f"s_mul_i32 s36, s41, 56\ns_lshl_b32 s37, s{sM}, 2\ns_add_u32 s36, s36, s37\ns_lshl_b32 s36, s36, 10\ns_add_u32 s43, s36, {WS_HID}")
    for t in range(2):
        for p in range(4):
            d = 16 + 4*((t*4+p) % 4)
            b = ACC + (t*8+2*p)*4
            for k in range(4): a(f"v_cvt_pk_bf16_f32 v{d+k}, v{b+2*k}, v{b+2*k+1}")
            for k in range(4): a(f"v_pk_max_i16 v{d+k}, v{d+k}, 0")
            a(f"s_add_u32 s36, s43, {t*57344 + p*1024}")
            a(f"buffer_store_dwordx4 {v(d)}, v{vL16}, {s(SRD_WS)}, s36 offen sc1"); vm.issue("hid")
    a(f"s_mul_i32 s36, s{sW}, 28672\ns_sub_u32 s37, s36, s74\ns_mov_b32 s74, s36")
    TB = 144
    for f in range(4): a(f"v_add_u32 v{TB+f}, s37, v{4+f}")
    def w2bdma(i, i4):
        def f():
            if i4 == 0: a(f"s_mul_i32 s72, s{57+i}, {32*896}\ns_add_u32 s72, s72, s75")
            a(f"s_add_u32 m0, s74, {i*4096 + i4*1024}\ns_add_u32 s46, s72, {i4*8*896}\nbuffer_load_dwordx4 v{vWOo}, {s(SRD_W2)}, s46 offen lds"); vm.issue("w2b")
        return f
    w2b = [w2bdma(i, i4) for i in range(7) for i4 in range(4)]
    NB1 = OPT.get("nb1", 12)
    for f in w2b[:NB1]: f()
    a(vm.wait("hid")); a("s_barrier")
    a.stamp("P3 stores drained")
    signal(a, FL_S3A, sM)
    a(f"s_lshl_b32 s42, s{sC}, 3\ns_lshl_b32 s37, s{sRH}, 2\ns_add_u32 s42, s42, s37")
    for u in range(4):
        a(f"s_add_u32 s36, s{sW}, {u}\ns_and_b32 s36, s36, 3\ns_mul_i32 s36, s36, 57344\nv_add_u32 v{4+u}, s36, v{vL16}")
    a(f"s_mul_i32 s38, s42, 57344\ns_add_u32 s43, s38, {WS_HID}")

    L = a.newlabel("WB")
    a(f"s_cmp_eq_u32 s{sW}, 2\ns_cbranch_scc1 {L}")
    n0 = len(vm.ops)
    for f in w2b[NB1:]: f()
    a.label(L)
    poll(a, FL_S3A, 14, 2)
    def late():
        save = list(vm.ops)
        for f in w2b[NB1:]: f()
        vm.ops = save
    only_wave(a, 2, late)
    a("s_barrier")
    a.stamp("S3 passed")
    ACT = 32; NB = 7; ACC = 160
    def mka(i, u):
        def f():
            if u == 0: a(f"s_lshl_b32 s37, s{50+i}, 10\ns_add_u32 s37, s37, s43")
            a(f"buffer_load_dwordx4 {v(ACT+((i % NB)*4+u)*4)}, v{4+u}, {s(SRD_WS)}, s37 offen sc1"); vm.issue(f"a{i}")
        return f
    al = [mka(i, u) for i in range(14) for u in range(4)]
    NUP = OPT.get("nup4", 12)
    for f in al[:NUP]: f()
    rest_vm = al[NUP:]
    WB = 224
    def wbreads(i): return [f"ds_read_b64_tr_b16 {ac(112+16*(i&1)+4*f+2*hf, 2)}, v{TB+f} offset:{(i-7)*4096 + hf*2048}" for f in range(4) for hf in range(2)]
    for i in range(14):
        if i >= 7: a(f"s_waitcnt vmcnt({vm.younger(f'a{i}')}) lgkmcnt(0)")
        else: a(f"s_waitcnt vmcnt({vm.younger(f'a{i}')})")
        Wf = (lambda f: ac(16*i+4*f)) if i < 7 else (lambda f: ac(112+16*(i&1)+4*f))
        mf = [f"{MF} {v(ACC+(u*4+f)*4)}, {Wf(f)}, {v(ACT+((i % NB)*4+u)*4)}, {'0' if i == 0 else v(ACC+(u*4+f)*4)}" for u in range(4) for f in range(4)]
        rd = wbreads(i+1) if 6 <= i < 13 else []
        take = rest_vm[:4]; rest_vm = rest_vm[4:]
        a.emit(merge(merge(mf, rd, first=0, every=1), take, first=1, every=5 if rd else 4))
    a.stamp("P4 loop end")
    RA = {1: 12, 2: 14, 3: 15}
    for u in range(1, 4):
        a(f"s_add_u32 s36, s{sW}, {u}\ns_and_b32 s36, s36, 3\ns_mul_i32 s36, s36, 12288\ns_add_u32 s36, s36, {LSTG + (u-1)*4096}\nv_add_u32 v{RA[u]}, s36, v{vL16}")
    for u in range(1, 4):
        for f in range(4): a(f"ds_write_b128 v{RA[u]}, {v(ACC+(u*4+f)*4)} offset:{f*1024}")
    a(f"s_mul_i32 s36, s{sW}, 12288\ns_add_u32 s36, s36, {LSTG}\nv_add_u32 v11, s36, v{vL16}")
    HV = 96
    for p in range(2):
        for k in range(4):
            a(f"v_lshlrev_b32 v{HV+8*p+2*k}, 16, v{HR+4*p+k}\nv_and_b32 v{HV+8*p+2*k+1}, 0xffff0000, v{HR+4*p+k}")
    a(f"v_and_b32 v13, 15, v{vL}\ns_lshl_b32 s37, s40, 4\nv_add_u32 v13, s37, v13\ns_movk_i32 s38, 896")
    a(f"v_bfe_u32 v14, v{vL}, 4, 1\nv_lshlrev_b32 v14, 5, v14\nv_mad_u32_u24 v13, v13, s38, v14\nv_lshrrev_b32 v14, 5, v{vL}\nv_lshl_add_u32 v13, v14, 4, v13\ns_lshl_b32 s37, s{sCG}, 7\nv_add_u32 v13, s37, v13")
    a("s_waitcnt lgkmcnt(0)\ns_barrier")
    R = 32
    for k in range(12): a(f"ds_read_b128 {v(R+4*k)}, v11 offset:{k*1024}")
    for sl in range(3):
        a(f"s_waitcnt lgkmcnt({8-4*sl})")
        for i in range(0, 16, 2): a(f"v_pk_add_f32 {v(ACC+i,2)}, {v(ACC+i,2)}, {v(R+16*sl+i,2)}")
    for i in range(0, 16, 2): a(f"v_pk_fma_f32 {v(ACC+i,2)}, {v(ACC+i,2)}, v[248:249], {v(HV+i,2)} op_sel:[0,1,0] op_sel_hi:[1,1,1]")
    D = 112
    for i in range(8): a(f"v_cvt_pk_bf16_f32 v{D+i}, v{ACC+2*i}, v{ACC+2*i+1}")
    for p in range(2):
        a(f"v_permlane16_swap_b32 v{D+4*p}, v{D+4*p+2}\nv_permlane16_swap_b32 v{D+4*p+1}, v{D+4*p+3}")
    for p in range(2): a(f"buffer_store_dwordx4 {v(D+4*p)}, v13, {s(SRD_OUT)}, 0 offen offset:{p*64}")
    if OPT["stamps"]:
        a("s_waitcnt vmcnt(0)"); a.stamp("end"); a.cstamp()
    if OPT.get("pf", 1):
        a("s_branch K_tail")
        a.label("K_pf")
        a(f"s_lshr_b32 s36, s2, 6\ns_lshl_b32 s36, s36, 2\ns_add_u32 s36, s36, s{sW}\ns_movk_i32 s38, 896\nv_mul_u32_u24 v13, s38, v{vL}")
        for k in range(13):
            a(f"s_add_u32 s40, s36, {16*k}\ns_mul_hi_u32 s37, s40, 0x24924925\ns_mul_i32 s41, s37, 7\ns_sub_u32 s41, s40, s41\ns_lshl_b32 s41, s41, 7")
            a(f"s_mul_i32 s37, s37, {64*896}\ns_add_u32 s37, s37, s41\nbuffer_load_dword v{20+k}, v13, {s(SRD_W2)}, s37 offen")
    a.label("K_tail")
    if OPT["stamps"]:
        n = a.nst
        a.c(f"stamp 0 CLK 0 {n-2} 1 {n-1}")
        a(f"s_lshl_b32 s36, s2, 2\ns_add_u32 s36, s36, s{sW}\ns_lshl_b32 s36, s36, 7\ns_add_u32 s36, s36, {WS_STAMP}")
        a(f"v_lshlrev_b32 v13, 2, v{vL}\ns_mov_b64 exec, 0xffffffff\nbuffer_store_dword v255, v13, {s(SRD_WS)}, s36 offen\ns_mov_b64 exec, -1")
    a.label("K_done"); a("s_endpgm")
    return a
def build():
    a = build_kernel()
    lines, npad = hazard.pad(a.l)
    print("instr lines", len(lines), "nop states", npad, "stamps", a.nst, file=sys.stderr)
    return wrap([(None, (256,1,1), (256,1,1), 163840)], [(None, "\n".join(lines) + "\n", 512, 102, 256)])
if __name__ == "__main__":
    ap = argparse.ArgumentParser(); ap.add_argument("out"); ap.add_argument("--stamps", action="store_true")
    ap.add_argument("--opt", action="append", default=[])
    o = ap.parse_args(); OPT["stamps"] = o.stamps
    for kv in o.opt:
        k, _, val = kv.partition("="); OPT[k] = (int(val) if val else True)
    open(o.out, "w").write(build())
```
